```python
import torch

def _softmax(x, axis=-1):
    return torch.softmax(x, dim=axis)
def _gelu(x):
    return torch.nn.functional.gelu(x, approximate="tanh")
def _silu(x):
    return torch.nn.functional.silu(x)
def _sigmoid(x):
    return torch.sigmoid(x)
def _layernorm(x, axis=-1, eps=1e-5):
    m = x.mean(dim=axis, keepdim=True)
    v = x.var(dim=axis, keepdim=True, unbiased=False)
    return (x - m) / torch.sqrt(v + eps)
def _scatter_add(tgt, idx, src, axis=0):
    return tgt.clone().index_add_(axis, idx, src)
def _segment_sum(src, seg, n):
    out = torch.zeros((n,) + src.shape[1:], dtype=src.dtype)
    return out.index_add_(0, seg, src)
def _pad(x, pw):
    flat = tuple(v for pair in reversed(pw) for v in pair)
    return torch.nn.functional.pad(x, flat)

kernel_name = 'interleave_layers__spectral_gfnet__glu_gated_reglu__prompt'

def setup_inputs():

    _w = (lambda a: (lambda t: t.to(torch.bfloat16) if t.is_floating_point() else t)(torch.as_tensor(a)))
    def _A_setup():
        B, S, D = 1, 2048, 512
        Df = D // 2 + 1
        return {
            "x": _w((lambda *s: torch.randn(*s, dtype=torch.bfloat16) * 0.05)(B, S, D)),
            "w_r": _w((lambda *s: torch.randn(*s, dtype=torch.bfloat16) * 0.4)(S, Df) * 0.02),
            "w_i": _w((lambda *s: torch.randn(*s, dtype=torch.bfloat16) * 0.4)(S, Df) * 0.02),
        }
    _A_in = _A_setup()

    def _B_setup():
        B, S, D, F = 1, 2048, 512, 1792
        return {
            "x": _w((lambda *s: torch.randn(*s, dtype=torch.bfloat16) * 0.05)(B, S, D)),
            "W_gate": _w((lambda *s: torch.randn(*s, dtype=torch.bfloat16) * 0.2)(D, F) * (2.0 / D) ** 0.5),
            "W_up": _w((lambda *s: torch.randn(*s, dtype=torch.bfloat16) * 0.2)(D, F) * (2.0 / D) ** 0.5),
            "W_down": _w((lambda *s: torch.randn(*s, dtype=torch.bfloat16) * 0.2)(F, D) * (1.0 / F) ** 0.5),
        }
    _B_in = _B_setup()

    return {
        "A_x": _A_in["x"],
        "A_w_r": _A_in["w_r"],
        "A_w_i": _A_in["w_i"],
        "B_x": _B_in["x"],
        "B_W_gate": _B_in["W_gate"],
        "B_W_up": _B_in["W_up"],
        "B_W_down": _B_in["W_down"],
    }

def reference(A_x, A_w_r, A_w_i, B_x, B_W_gate, B_W_up, B_W_down):
    def _A_ref(x, w_r, w_i):
        B, S, D = x.shape
        X = (lambda x, axes=(-2,-1): torch.fft.rfft2(x.float(), dim=axes))(x, axes=(-2, -1))
        W = w_r + 1j * w_i
        X = X * W
        y = (lambda x, s, axes=(-2,-1): torch.fft.irfft2(x, s=s, dim=axes).to(torch.bfloat16))(X, (S, D), axes=(-2, -1))
        return y

    def _B_ref(x, W_gate, W_up, W_down):
        gate = torch.einsum("bsd,df->bsf", x, W_gate)
        up = torch.einsum("bsd,df->bsf", x, W_up)
        gate = gate * (lambda x, dt: x.to(dt))(gate > 0, gate.dtype)
        h = gate * up
        return torch.einsum("bsf,fd->bsd", h, W_down)

    x = A_x
    x = x + _A_ref(_layernorm(x, axis=-1), A_w_r, A_w_i)
    x = x + _B_ref(_layernorm(x, axis=-1), B_W_gate, B_W_up, B_W_down)
    x = x + _A_ref(_layernorm(x, axis=-1), A_w_r, A_w_i)
    x = x + _B_ref(_layernorm(x, axis=-1), B_W_gate, B_W_up, B_W_down)
    return x
```

```python
import re

REG_RE = re.compile(r'^(-|abs\()?\s*([vsa])(\d+)\)?$')
RANGE_RE = re.compile(r'^(-)?([vsa])\[(\d+):(\d+)\]$')

TRANS = ('v_exp_f32', 'v_log_f32', 'v_rcp_f32', 'v_rsq_f32', 'v_sqrt_f32', 'v_sin_f32', 'v_cos_f32',
         'v_rcp_iflag_f32')


def parse_operand(op):
    op = op.strip()
    m = RANGE_RE.match(op)
    if m:
        return {(m.group(2), i) for i in range(int(m.group(3)), int(m.group(4)) + 1)}
    m = REG_RE.match(op)
    if m:
        return {(m.group(2), int(m.group(3)))}
    if op == 'vcc':
        return {('vcc', 0)}
    if op == 'exec':
        return {('exec', 0)}
    if op == 'm0':
        return {('m0', 0)}
    return set()


def split_ops(rest):
    out, depth, cur = [], 0, ''
    for ch in rest:
        if ch in '[(':
            depth += 1
        if ch in '])':
            depth -= 1
        if ch == ',' and depth == 0:
            out.append(cur.strip())
            cur = ''
        else:
            cur += ch
    if cur.strip():
        out.append(cur.strip())
    return out


def mfma_info(mn):
    if mn in ('v_mfma_f32_32x32x16_bf16', 'v_mfma_f32_32x32x16_f16'):
        return ('xdl', 8)
    if mn in ('v_mfma_f32_16x16x32_bf16', 'v_mfma_f32_16x16x32_f16'):
        return ('xdl', 4)
    if mn == 'v_mfma_f32_16x16x4_f32':
        return ('sgemm', 8)
    if mn == 'v_mfma_f32_32x32x2_f32':
        return ('sgemm', 16)
    raise ValueError(mn)


class Ins:
    def __init__(self, text):
        self.text = text
        t = text.split(';')[0].strip()
        self.kind = 'other'
        self.mn = ''
        self.w = set()
        self.r = set()
        self.srcs = []
        self.states = 1
        self.label = None
        if not t or t.startswith('.'):
            self.kind = 'directive'
            self.states = 0
            return
        if t.endswith(':'):
            self.kind = 'label'
            self.label = t[:-1]
            self.states = 0
            return
        parts = t.split(None, 1)
        mn = parts[0]
        self.mn = mn
        rest = parts[1] if len(parts) > 1 else ''
        ops = split_ops(rest)
        mods = ''
        if ops:
            last = ops[-1].split(None, 1)
            ops[-1] = last[0]
            mods = last[1] if len(last) > 1 else ''
        self.mods = mods
        self.ops = ops
        P = [parse_operand(o) for o in ops]
        self.dpp = ('_dpp' in mn) or ('quad_perm' in mods) or ('row_' in mods)
        self.sdwa = '_sdwa' in mn
        if mn == 'v_nop':
            self.kind = 'nop'
        elif mn == 's_nop':
            self.kind = 'nop'
            self.states = int(ops[0], 0) + 1
        elif mn.startswith('v_mfma'):
            self.kind = 'mfma'
            self.cls, self.passes = mfma_info(mn)
            self.w = P[0]
            self.a, self.b, self.c = P[1], P[2], P[3]
            self.r = P[1] | P[2] | P[3]
        elif mn.startswith('v_'):
            self.kind = 'valu'
            base = mn.replace('_e32', '').replace('_e64', '').replace('_dpp', '').replace('_sdwa', '')
            self.base = base
            self.w = set(P[0])
            rs = P[1:]
            if base in ('v_add_co_u32', 'v_sub_co_u32', 'v_addc_co_u32', 'v_subb_co_u32', 'v_mad_u64_u32'):
                self.w |= P[1]
                rs = P[2:]
            for x in rs:
                self.r |= x
            if base.startswith('v_fmac') or base.startswith('v_dot2c') or base.startswith('v_pk_fmac') or self.dpp:
                self.r |= P[0]
            if base.startswith('v_permlane') and 'swap' in base:
                self.w |= P[1]
                self.r |= P[0]
            if base.startswith('v_cmpx'):
                self.w |= {('exec', 0)}
            if base == 'v_writelane_b32':
                self.r |= P[0]
            self.trans = base in TRANS
            self.dot = base.startswith('v_dot')
        elif mn.startswith('buffer_') or mn.startswith('global_') or mn.startswith('flat_'):
            self.kind = 'vmem'
            self.lds = (' lds' in (' ' + mods)) or '_lds_' in mn
            self.store = ('store' in mn) or ('atomic' in mn)
            if mn in ('buffer_wbl2', 'buffer_inv'):
                pass
            elif self.lds:
                for x in P:
                    self.r |= x
                self.r |= {('m0', 0)}
            elif 'load' in mn:
                self.w = P[0]
                for x in P[1:]:
                    self.r |= x
                if 'd16' in mn:
                    self.r |= P[0]
            else:
                for x in P:
                    self.r |= x
                if 'atomic' in mn and 'sc0' in mods:
                    self.w = P[0]
                if mn.startswith('buffer_'):
                    self.data = P[0]
                else:
                    self.data = P[1]
                self.wide = ('x3' in mn or 'x4' in mn)
        elif mn.startswith('ds_'):
            self.kind = 'ds'
            if 'read' in mn or 'permute' in mn or 'swizzle' in mn or 'rtn' in mn:
                self.w = P[0]
                for x in P[1:]:
                    self.r |= x
            else:
                for x in P:
                    self.r |= x
        elif mn.startswith('s_'):
            self.kind = 'salu'
            if mn.startswith('s_cmp') or mn.startswith('s_cbranch') or mn in ('s_branch', 's_waitcnt', 's_barrier', 's_endpgm', 's_sleep', 's_setprio', 's_bitcmp0_b32', 's_bitcmp1_b32'):
                for x in P:
                    self.r |= x
            else:
                if P:
                    self.w = set(P[0])
                for x in P[1:]:
                    self.r |= x
                if 'saveexec' in mn:
                    self.w |= {('exec', 0)}
            if mn.startswith('s_load') or mn.startswith('s_buffer_load') or mn.startswith('s_atomic') or mn.startswith('s_mem'):
                self.kind = 'smem'
        else:
            raise ValueError('unknown instruction: ' + text)


def isv(s):
    return {x for x in s if x[0] in 'va' and x[0] != 'vcc'}


def iss(s):
    return {x for x in s if x[0] in ('s', 'vcc')}


PI = {2: 0, 4: 1, 8: 2, 16: 3}


def need(p, c):
    n = 0
    if p.kind == 'valu':
        pv = isv(p.w)
        ps = iss(p.w)
        if c.kind == 'mfma' and pv & c.r:
            n = max(n, 3 if p.dot else 2)
        if c.kind == 'valu':
            if pv & c.r:
                if c.dpp:
                    n = max(n, 2)
                if c.base.startswith('v_permlane'):
                    n = max(n, 2)
                if c.base in ('v_readlane_b32', 'v_readfirstlane_b32'):
                    n = max(n, 1)
                if p.trans and not c.trans:
                    n = max(n, 1)
                if p.sdwa or 'op_sel' in p.mods and not p.base.startswith('v_pk'):
                    n = max(n, 1)
            if p.dot and (pv & (c.r | c.w)):
                if c.base == p.base and not (pv & set().union(*[parse_operand(o) for o in c.ops[1:]])):
                    pass
                else:
                    n = max(n, 3)
            if ps & c.r:
                n = max(n, 4 if c.base in ('v_readlane_b32', 'v_writelane_b32') else 2)
            if ('exec', 0) in p.w:
                n = max(n, 5 if c.dpp else 4)
        if c.kind in ('vmem', 'ds') and p.dot and (pv & c.r):
            n = max(n, 3)
        if c.kind in ('vmem', 'ds') and p.trans and (pv & c.r):
            n = max(n, 1)
        if c.kind == 'vmem' and ps & c.r:
            n = max(n, 5)
        if c.kind in ('salu', 'smem') and ps & c.r:
            n = max(n, 2)
        if c.kind == 'mfma' and ('exec', 0) in p.w:
            n = max(n, 4)
    elif p.kind == 'mfma':
        k = PI[p.passes]
        xdl = p.cls == 'xdl'
        if c.kind == 'mfma':
            if p.w & (c.a | c.b):
                n = max(n, ([5, 8, 12, 20] if xdl else [4, 6, 10, 18])[k])
            if p.w & c.c:
                same = (p.w == c.c and p.passes == c.passes and p.cls == c.cls)
                if same:
                    n = max(n, [2, 0, 0, 0][k])
                elif xdl:
                    n = max(n, [4, 6, 10, 18][k])
                else:
                    n = max(n, [2, 4, 8, 16][k])
            elif p.w & c.w:
                n = max(n, ([4, 6, 10, 18])[k])
        elif c.kind in ('valu', 'vmem', 'ds'):
            if p.w & (c.r | c.w):
                n = max(n, ([5, 8, 12, 20] if xdl else [4, 6, 10, 18])[k])
            if c.kind == 'valu' and xdl and (p.c & c.w):
                n = max(n, [1, 3, 7, 15][k])
    elif p.kind == 'vmem':
        if getattr(p, 'wide', False) and (p.data & c.w):
            n = max(n, 2 if c.kind in ('valu', 'mfma') else 1)
    elif p.kind == 'salu':
        if ('m0', 0) in p.w and c.kind == 'vmem' and getattr(c, 'lds', False):
            n = max(n, 1)
    return n


class Asm:
    def __init__(self):
        self.ins = []

    def __call__(self, text):
        for line in text.split('\n'):
            if line.strip():
                self.ins.append(Ins(line.strip()))

    def raw(self, text):
        i = Ins('.')
        i.text = text
        self.ins.append(i)

    def finalize(self):
        out = []

        def required(hist, c):
            dist = 0
            req = 0
            for p in reversed(hist):
                if dist >= 20:
                    break
                if p.kind == 'salu' and p.mn in ('s_endpgm', 's_branch'):
                    break
                if p.states:
                    r = need(p, c) - dist
                    req = max(req, r)
                dist += p.states
            return req

        for c in self.ins:
            if c.states and c.kind != 'nop':
                r = required(out, c)
                while r > 0:
                    k = min(r, 16)
                    out.append(Ins('s_nop %d' % (k - 1)))
                    r -= k
            out.append(c)
        labels = {x.label: i for i, x in enumerate(out) if x.kind == 'label'}
        for i, x in enumerate(out):
            if x.kind == 'salu' and (x.mn.startswith('s_cbranch') or x.mn == 's_branch'):
                tgt = x.ops[0]
                if tgt not in labels:
                    continue
                hist = [h for h in out[max(0, i - 40):i]] + [Ins('s_nop 0')]
                j = labels[tgt]
                cnt = 0
                while j < len(out) and cnt < 22:
                    c = out[j]
                    if c.states:
                        if c.kind != 'nop':
                            r = required(hist, c)
                            assert r <= 0, 'hazard across branch %s -> %s: %s needs %d more' % (x.text, tgt, c.text, r)
                        cnt += c.states
                        if c.kind == 'salu' and c.mn in ('s_endpgm', 's_branch'):
                            break
                    hist.append(c)
                    j += 1
        lines = []
        for x in out:
            if x.kind in ('label', 'directive'):
                lines.append(x.text)
            else:
                lines.append('    ' + x.text)
        return '\n'.join(lines) + '\n'
```

```python
import struct, sys
from asmlib import Asm

NAME = 'interleave_layers__spectral_gfnet__glu_gated_reglu__prompt'

WS_U, WS_V, WS_X1, WS_X2, WS_XN = 0x000000, 0x200000, 0x400000, 0x600000, 0x800000
WS_H, WS_WP, WS_WGU, WS_WD = 0xA00000, 0x1200000, 0x1400000, 0x1800000
SZ_2M = 0x200000
SZ_H = 64 * 112 * 1024
SZ_WGU = 16 * 229376
SZ_WD = 16 * 114688
KA_X, KA_WR, KA_WI, KA_WG, KA_WU, KA_WD, KA_OUT, KA_DBG, KA_WS = 0, 8, 16, 32, 40, 48, 56, 64, 72


def v(i, n=1):
    return f'v{i}' if n == 1 else f'v[{i}:{i+n-1}]'


def s(i, n=1):
    return f's{i}' if n == 1 else f's[{i}:{i+n-1}]'


def ar(i, n=1):
    return f'a{i}' if n == 1 else f'a[{i}:{i+n-1}]'


def f32(x):
    return '0x%08x' % struct.unpack('<I', struct.pack('<f', x))[0]


def srd(a, dst, base, off, size):
    if off:
        a(f's_add_u32 {s(dst)}, {s(base)}, 0x{off:x}')
        a(f's_addc_u32 {s(dst+1)}, {s(base+1)}, 0')
    else:
        a(f's_mov_b32 {s(dst)}, {s(base)}')
        a(f's_mov_b32 {s(dst+1)}, {s(base+1)}')
    a(f's_mov_b32 {s(dst+2)}, 0x{size:x}')
    a(f's_mov_b32 {s(dst+3)}, 0x20000')


def mfma16(a, d, x, y, c):
    cc = '0' if c is None else v(c, 4)
    a(f'v_mfma_f32_16x16x32_bf16 {v(d,4)}, {v(x,4)}, {v(y,4)}, {cc}')


def angle(a, dst, step, k, base):
    if base is None:
        if k == 0:
            a(f'v_mov_b32 {v(dst)}, 0')
        else:
            a(f'v_mul_f32 {v(dst)}, {f32(k)}, {v(step)}')
    elif k == 0:
        a(f'v_mov_b32 {v(dst)}, {v(base)}')
    elif k == 1:
        a(f'v_add_f32 {v(dst)}, {v(step)}, {v(base)}')
    else:
        a(f'v_fmamk_f32 {v(dst)}, {v(step)}, {f32(k)}, {v(base)}')


def sgn(x, neg):
    return ('-' if neg else '') + v(x)


def rot(c, sn, k):
    k &= 3
    return [((c, 0), (sn, 0)), ((sn, 1), (c, 0)), ((c, 1), (sn, 1)), ((sn, 0), (c, 1))][k]


def cvtpk(a, d, lo, hi):
    a(f'v_cvt_pk_bf16_f32 {v(d)}, {sgn(*lo)}, {sgn(*hi)}')


def xcd_swizzle(a, dst):
    a(f's_and_b32 {s(dst)}, s2, 7')
    a(f's_lshl_b32 {s(dst)}, {s(dst)}, 5')
    a(f's_lshr_b32 s3, s2, 3')
    a(f's_add_u32 {s(dst)}, {s(dst)}, s3')


def lane_ids(a, I, Q, W):
    a(f'v_and_b32 {v(I)}, 15, v0')
    a(f'v_bfe_u32 {v(Q)}, v0, 4, 2')
    a(f'v_lshrrev_b32 {v(W)}, 6, v0')


def p1(a, layer):
    I, Q, W, VO, E1, T0, T1, T2, T3, FI, FQ = 1, 2, 3, 4, 5, 6, 7, 8, 9, 10, 11
    MASK0, SO = 12, 13
    L, A, BC, BS, ONES, DRE, DIM, DSUM, DSQ = 16, 48, 80, 88, 96, 100, 116, 132, 136
    TC, TS, TW, C2, S2, N2 = 140, 148, 156, 188, 204, 220
    TRE, TIM, FRE, FIM, D2R, D2I, OUT = 16, 32, 48, 56, 64, 72, 80
    P = 236
    ONEF = 240
    ST = 242
    a(f's_load_dwordx2 s[6:7], s[0:1], {KA_WS}')
    if layer == 0:
        a(f's_load_dwordx2 s[4:5], s[0:1], {KA_X}')
    xcd_swizzle(a, 16)
    lane_ids(a, I, Q, W)
    a(f'v_lshrrev_b32 {v(T0)}, 1, {v(I)}')
    a(f'v_lshlrev_b32 {v(VO)}, 18, {v(T0)}')
    a(f'v_lshl_add_u32 {v(VO)}, {v(Q)}, 4, {v(VO)}')
    a(f'v_and_b32 {v(T0)}, 1, {v(I)}')
    a(f'v_lshl_add_u32 {v(VO)}, {v(T0)}, 3, {v(VO)}')
    a(f's_lshl_b32 s17, s16, 10')
    a(f's_waitcnt lgkmcnt(0)')
    if layer == 0:
        srd(a, 8, 4, 0, SZ_2M)
    else:
        srd(a, 8, 6, WS_X2, SZ_2M)
    for k in range(16):
        a(f'buffer_load_dwordx2 {v(L+2*k,2)}, {v(VO)}, s[8:11], s17 offen offset:{64*k}')
    srd(a, 12, 6, WS_U, SZ_2M)
    a(f'v_lshl_add_u32 {v(E1)}, {v(W)}, 4, {v(I)}')
    a(f'v_cvt_f32_u32 {v(T0)}, {v(E1)}')
    a(f'v_cvt_f32_u32 {v(FQ)}, {v(Q)}')
    a(f'v_mul_f32 {v(T1)}, {f32(1/16)}, {v(T0)}')
    a(f'v_mul_f32 {v(T2)}, {v(T0)}, {v(FQ)}')
    a(f'v_mul_f32 {v(T2)}, {f32(1/64)}, {v(T2)}')
    TMP = DRE
    for e in range(8):
        angle(a, TMP + e, T1, e, T2)
    for e in range(8):
        a(f'v_sin_f32 {v(TMP+8+e)}, {v(TMP+e)}')
        a(f'v_cos_f32 {v(TMP+e)}, {v(TMP+e)}')
    a(f'v_and_b32 {v(T3)}, 1, {v(E1)}')
    a(f's_mov_b32 s18, 0x80008000')
    a(f'v_mul_lo_u32 {v(T3)}, {v(T3)}, s18')
    for j in range(4):
        cvtpk(a, BC + j, (TMP + 2*j, 0), (TMP + 2*j + 1, 0))
        cvtpk(a, BS + j, (TMP + 8 + 2*j, 1), (TMP + 8 + 2*j + 1, 1))
    for j in range(4):
        a(f'v_xor_b32 {v(BC+4+j)}, {v(BC+j)}, {v(T3)}')
        a(f'v_xor_b32 {v(BS+4+j)}, {v(BS+j)}, {v(T3)}')
    for j in range(4):
        a(f'v_mov_b32 {v(ONES+j)}, 0x3f803f80')
        a(f'v_mov_b32 {v(P+j)}, 0')
    a(f'v_mov_b32 {v(ONEF)}, 1.0')
    a(f'v_cmp_eq_u32 vcc, 0, {v(E1)}')
    a(f'v_mov_b32 {v(T1)}, {f32(256.0)}')
    a(f'v_cndmask_b32 {v(T0)}, {v(T0)}, {v(T1)}, vcc')
    a(f'v_mov_b32 {v(T1)}, {f32(-0.125)}')
    a(f'v_cndmask_b32 {v(MASK0)}, 0, {v(T1)}, vcc')
    a(f'v_mul_f32 {v(T0)}, {f32(1/512)}, {v(T0)}')
    for d2 in range(8):
        r = 2 * (d2 & 3) + (d2 >> 2)
        angle(a, TC + r, T0, d2, None)
    for r in range(8):
        a(f'v_sin_f32 {v(TS+r)}, {v(TC+r)}')
        a(f'v_cos_f32 {v(TC+r)}, {v(TC+r)}')
    a(f'v_and_b32 {v(T0)}, 7, {v(I)}')
    a(f'v_cvt_f32_u32 {v(T0)}, {v(T0)}')
    a(f'v_mul_f32 {v(T0)}, {f32(1/8)}, {v(T0)}')
    a(f'v_lshrrev_b32 {v(T1)}, 3, {v(I)}')
    a(f'v_cvt_f32_u32 {v(T1)}, {v(T1)}')
    a(f'v_mul_f32 {v(T1)}, {f32(1/8)}, {v(T1)}')
    a(f'v_mul_f32 {v(T2)}, {v(T0)}, {v(FQ)}')
    a(f'v_add_f32 {v(T2)}, {v(T2)}, {v(T2)}')
    a(f'v_add_f32 {v(T3)}, {v(T2)}, {v(T0)}')
    for mt in range(4):
        for r in range(4):
            angle(a, TMP + 4*mt + r, T1, 4*(r & 1) + mt, T3 if r >> 1 else T2)
    for k in range(16):
        a(f'v_sin_f32 {v(TMP+16+k)}, {v(TMP+k)}')
        a(f'v_cos_f32 {v(TMP+k)}, {v(TMP+k)}')
    for m in range(2):
        for u in range(2):
            for jj in range(4):
                mt = 2*u + (jj >> 1)
                r0 = 2*(jj & 1)
                k0, k1_ = 4*mt + r0, 4*mt + r0 + 1
                c0, s0 = rot(TMP + k0, TMP + 16 + k0, mt*m)
                c1, s1 = rot(TMP + k1_, TMP + 16 + k1_, mt*m)
                o = 8*m + 4*u + jj
                cvtpk(a, C2 + o, c0, c1)
                cvtpk(a, S2 + o, s0, s1)
                cvtpk(a, N2 + o, (s0[0], 1 - s0[1]), (s1[0], 1 - s1[1]))
    a(f'v_lshrrev_b32 {v(T0)}, 1, {v(Q)}')
    a(f'v_lshl_add_u32 {v(T0)}, {v(T0)}, 4, {v(I)}')
    a(f'v_lshl_add_u32 {v(T0)}, {v(W)}, 6, {v(T0)}')
    a(f'v_lshlrev_b32 {v(SO)}, 13, {v(T0)}')
    a(f'v_and_b32 {v(T0)}, 1, {v(Q)}')
    a(f'v_lshl_add_u32 {v(SO)}, {v(T0)}, 4, {v(SO)}')
    a(f's_lshl_b32 s19, s16, 5')
    a(f's_add_u32 s20, s19, 0x40000')
    a(f's_mov_b32 s21, 0x05040100')
    a(f's_mov_b32 s22, 0x07060302')
    for t in range(2):
        a(f's_waitcnt vmcnt({8 - 8*t})')
        for mt in range(4):
            for j in range(4):
                lo = L + 2*(8*t + 2*j) + (mt >> 1)
                hi = L + 2*(8*t + 2*j + 1) + (mt >> 1)
                a(f'v_perm_b32 {v(A+8*mt+4*t+j)}, {v(hi)}, {v(lo)}, s{21 + (mt & 1)}')
            for j in range(4):
                x = L + 16*t + 4*mt + j
                a(f'v_dot2c_f32_bf16 {v(P+j)}, {v(x)}, {v(x)}')
            fr = A + 8*mt + 4*t
            mfma16(a, DRE + 4*mt, fr, BC + 4*t, None if t == 0 else DRE + 4*mt)
            mfma16(a, DIM + 4*mt, fr, BS + 4*t, None if t == 0 else DIM + 4*mt)
            mfma16(a, DSUM, fr, ONES, None if (t == 0 and mt == 0) else DSUM)
    a(f'v_pk_add_f32 {v(P,2)}, {v(P,2)}, {v(P+2,2)}')
    a(f'v_add_f32 {v(P)}, {v(P)}, {v(P+1)}')
    a(f'v_mfma_f32_16x16x4_f32 {v(DSQ,4)}, {v(P)}, {v(ONEF)}, 0')
    a(f'v_add_f32 {v(ST)}, {v(DSUM)}, {v(DSUM+1)}')
    a(f'v_add_f32 {v(ST+1)}, {v(DSUM+2)}, {v(DSUM+3)}')
    a(f'v_mul_f32 {v(ST+4)}, {v(ST)}, {v(MASK0)}')
    a(f'v_mul_f32 {v(ST+5)}, {v(ST+1)}, {v(MASK0)}')
    a(f'v_mul_f32 {v(ST)}, {f32(1/512)}, {v(ST)}')
    a(f'v_mul_f32 {v(ST+1)}, {f32(1/512)}, {v(ST+1)}')
    for mt in range(4):
        a(f'v_pk_add_f32 {v(DRE+4*mt,2)}, {v(DRE+4*mt,2)}, {v(ST+4,2)} op_sel:[0,0] op_sel_hi:[1,0]')
        a(f'v_pk_add_f32 {v(DRE+4*mt+2,2)}, {v(DRE+4*mt+2,2)}, {v(ST+4,2)} op_sel:[0,1] op_sel_hi:[1,1]')
    a(f'v_add_f32 {v(ST+2)}, {v(DSQ)}, {v(DSQ+1)}')
    a(f'v_add_f32 {v(ST+3)}, {v(DSQ+2)}, {v(DSQ+3)}')
    a(f'v_mul_f32 {v(ST+2)}, {f32(1/512)}, {v(ST+2)}')
    a(f'v_mul_f32 {v(ST+3)}, {f32(1/512)}, {v(ST+3)}')
    a(f'v_fma_f32 {v(ST+2)}, -{v(ST)}, {v(ST)}, {v(ST+2)}')
    a(f'v_fma_f32 {v(ST+3)}, -{v(ST+1)}, {v(ST+1)}, {v(ST+3)}')
    a(f'v_max_f32 {v(ST+2)}, 0, {v(ST+2)}')
    a(f'v_max_f32 {v(ST+3)}, 0, {v(ST+3)}')
    a(f'v_add_f32 {v(ST+2)}, {f32(1e-5)}, {v(ST+2)}')
    a(f'v_add_f32 {v(ST+3)}, {f32(1e-5)}, {v(ST+3)}')
    a(f'v_rsq_f32 {v(ST+2)}, {v(ST+2)}')
    a(f'v_rsq_f32 {v(ST+3)}, {v(ST+3)}')
    for z in range(2):
        sel = f'op_sel:[0,{z}] op_sel_hi:[1,{z}]'
        for k in range(8):
            a(f'v_pk_mul_f32 {v(TW+16*z+2*k,2)}, {v(TC+2*k,2)}, {v(ST+2,2)} {sel}')
    for u in range(2):
        for mt in (2*u, 2*u + 1):
            for z in range(2):
                c, sn = TW + 16*z + 2*mt, TW + 16*z + 8 + 2*mt
                re, im = DRE + 4*mt + 2*z, DIM + 4*mt + 2*z
                R, Im = TRE + 4*mt + 2*z, TIM + 4*mt + 2*z
                a(f'v_pk_mul_f32 {v(R,2)}, {v(re,2)}, {v(c,2)}')
                a(f'v_pk_mul_f32 {v(Im,2)}, {v(im,2)}, {v(c,2)}')
                a(f'v_pk_fma_f32 {v(R,2)}, {v(im,2)}, {v(sn,2)}, {v(R,2)}')
                a(f'v_pk_fma_f32 {v(Im,2)}, {v(re,2)}, {v(sn,2)}, {v(Im,2)} neg_lo:[1,0,0] neg_hi:[1,0,0]')
        for jj in range(4):
            k = 8*u + 2*jj
            cvtpk(a, FRE + 4*u + jj, (TRE + k, 0), (TRE + k + 1, 0))
            cvtpk(a, FIM + 4*u + jj, (TIM + k, 0), (TIM + k + 1, 0))
        for m in range(2):
            o = 8*m + 4*u
            mfma16(a, D2R + 4*m, C2 + o, FRE + 4*u, None if u == 0 else D2R + 4*m)
            mfma16(a, D2I + 4*m, C2 + o, FIM + 4*u, None if u == 0 else D2I + 4*m)
        for m in range(2):
            o = 8*m + 4*u
            mfma16(a, D2R + 4*m, S2 + o, FIM + 4*u, D2R + 4*m)
            mfma16(a, D2I + 4*m, N2 + o, FRE + 4*u, D2I + 4*m)
    for m in range(2):
        for r in range(4):
            cvtpk(a, OUT + 4*m + r, (D2R + 4*m + r, 0), (D2I + 4*m + r, 0))
        a(f'buffer_store_dwordx4 {v(OUT+4*m,4)}, {v(SO)}, s[12:15], s{19+m} offen')
    a('s_endpgm')
    return 250


def cmul(a, R, Im, re, im, c, sn, conj):
    for h in (0, 2):
        a(f'v_pk_mul_f32 {v(R+h,2)}, {v(re+h,2)}, {v(c+h,2)}')
        a(f'v_pk_mul_f32 {v(Im+h,2)}, {v(im+h,2)}, {v(c+h,2)}')
    ng = 'neg_lo:[1,0,0] neg_hi:[1,0,0]'
    for h in (0, 2):
        a(f'v_pk_fma_f32 {v(R+h,2)}, {v(im+h,2)}, {v(sn+h,2)}, {v(R+h,2)} {ng if conj else ""}')
        a(f'v_pk_fma_f32 {v(Im+h,2)}, {v(re+h,2)}, {v(sn+h,2)}, {v(Im+h,2)} {"" if conj else ng}')


def p2(a):
    I, Q, W, VO, T0, T1, T2, T3, FI, FQ4, SO, WO = 1, 2, 3, 4, 5, 6, 7, 8, 9, 10, 11, 12
    X = 16
    WL = 24
    WR, WI = 32, 40
    B1R, B1I = 48, 56
    T1C, T1S = 64, 72
    F2R, F2I, F3R, F3I = 80, 84, 88, 92
    T2C, T2S = 96, 104
    A4R, A4I = 112, 120
    DR, DI = 128, 136
    RR, RI = 144, 152
    TMP = 160
    OUT = 176
    a(f's_load_dwordx2 s[6:7], s[0:1], {KA_WS}')
    xcd_swizzle(a, 16)
    lane_ids(a, I, Q, W)
    a(f'v_lshlrev_b32 {v(VO)}, 11, {v(Q)}')
    a(f'v_lshl_add_u32 {v(VO)}, {v(I)}, 5, {v(VO)}')
    a(f'v_lshl_add_u32 {v(VO)}, {v(W)}, 3, {v(VO)}')
    a(f'v_lshlrev_b32 {v(WO)}, 5, v0')
    a(f's_lshl_b32 s17, s16, 13')
    a(f's_waitcnt lgkmcnt(0)')
    srd(a, 8, 6, WS_U, SZ_2M)
    for z in range(2):
        for r in range(4):
            a(f'buffer_load_dword {v(X+4*z+r)}, {v(VO)}, s[8:11], s17 offen offset:{512*r+4*z}')
    srd(a, 20, 6, WS_WP, SZ_2M)
    for z in range(2):
        a(f'buffer_load_dwordx4 {v(WL+4*z,4)}, {v(WO)}, s[20:23], s17 offen offset:{16*z}')
    srd(a, 12, 6, WS_V, SZ_2M)
    a(f'v_cvt_f32_u32 {v(FI)}, {v(I)}')
    a(f'v_lshlrev_b32 {v(T0)}, 2, {v(Q)}')
    a(f'v_cvt_f32_u32 {v(FQ4)}, {v(T0)}')
    a(f's_cmp_eq_u32 s16, 0')
    a(f's_mov_b32 s19, {f32(2.0**-19)}')
    a(f's_cselect_b32 s18, {f32(2.0**-20)}, s19')
    for z in range(2):
        a(f'v_lshlrev_b32 {v(T0)}, 1, {v(W)}')
        a(f'v_lshl_add_u32 {v(T0)}, {v(I)}, 3, {v(T0)}')
        if z:
            a(f'v_add_u32 {v(T0)}, 1, {v(T0)}')
        a(f'v_cvt_f32_u32 {v(T0)}, {v(T0)}')
        a(f'v_mul_f32 {v(T0)}, {f32(1/128)}, {v(T0)}')
        a(f'v_mul_f32 {v(T1)}, {v(T0)}, {v(FQ4)}')
        for r in range(4):
            angle(a, TMP + r, T0, r, T1)
        for r in range(4):
            a(f'v_mul_f32 {v(T1C+4*z+r)}, {f32(1/16)}, {v(TMP+r)}')
        for r in range(4):
            a(f'v_sin_f32 {v(TMP+4+r)}, {v(TMP+r)}')
            a(f'v_cos_f32 {v(TMP+r)}, {v(TMP+r)}')
            a(f'v_sin_f32 {v(T1S+4*z+r)}, {v(T1C+4*z+r)}')
            a(f'v_cos_f32 {v(T1C+4*z+r)}, {v(T1C+4*z+r)}')
        for r in range(4):
            cvtpk(a, B1R + 4*z + r, (TMP + r, 0), (TMP + 4 + r, 0))
            cvtpk(a, B1I + 4*z + r, (TMP + 4 + r, 1), (TMP + r, 0))
    a(f'v_mul_f32 {v(T0)}, {f32(1/16)}, {v(FI)}')
    a(f'v_mul_f32 {v(T1)}, {v(T0)}, {v(FQ4)}')
    for r in range(4):
        angle(a, TMP + r, T0, r, T1)
    for r in range(4):
        a(f'v_sin_f32 {v(TMP+4+r)}, {v(TMP+r)}')
        a(f'v_cos_f32 {v(TMP+r)}, {v(TMP+r)}')
    for r in range(4):
        cvtpk(a, F2R + r, (TMP + r, 0), (TMP + 4 + r, 0))
        cvtpk(a, F2I + r, (TMP + 4 + r, 1), (TMP + r, 0))
        cvtpk(a, F3R + r, (TMP + r, 0), (TMP + 4 + r, 1))
        cvtpk(a, F3I + r, (TMP + 4 + r, 0), (TMP + r, 0))
    for z in range(2):
        a(f'v_lshlrev_b32 {v(T2)}, 1, {v(W)}')
        a(f'v_lshl_add_u32 {v(T2)}, {v(Q)}, 5, {v(T2)}')
        if z:
            a(f'v_add_u32 {v(T2)}, 1, {v(T2)}')
        a(f'v_cvt_f32_u32 {v(T2)}, {v(T2)}')
        a(f'v_mul_f32 {v(T2)}, {v(T2)}, {v(FI)}')
        a(f'v_mul_f32 {v(T2)}, {f32(1/128)}, {v(T2)}')
        for r in range(4):
            angle(a, TMP + r, T0, r, T2)
        for r in range(4):
            a(f'v_mul_f32 {v(T2C+4*z+r)}, {f32(1/16)}, {v(TMP+r)}')
        for r in range(4):
            a(f'v_sin_f32 {v(TMP+4+r)}, {v(TMP+r)}')
            a(f'v_cos_f32 {v(TMP+r)}, {v(TMP+r)}')
            a(f'v_sin_f32 {v(T2S+4*z+r)}, {v(T2C+4*z+r)}')
            a(f'v_cos_f32 {v(T2C+4*z+r)}, {v(T2C+4*z+r)}')
        for r in range(4):
            cvtpk(a, A4R + 4*z + r, (TMP + r, 0), (TMP + 4 + r, 1))
            cvtpk(a, A4I + 4*z + r, (TMP + 4 + r, 0), (TMP + r, 0))
            a(f'v_mul_f32 {v(T2C+4*z+r)}, s18, {v(T2C+4*z+r)}')
            a(f'v_mul_f32 {v(T2S+4*z+r)}, s18, {v(T2S+4*z+r)}')
    a(f'v_lshl_add_u32 {v(T2)}, {v(Q)}, 6, {v(I)}')
    a(f'v_lshlrev_b32 {v(SO)}, 13, {v(T2)}')
    a(f'v_lshrrev_b32 {v(T2)}, 1, {v(W)}')
    a(f'v_lshl_add_u32 {v(SO)}, {v(T2)}, 10, {v(SO)}')
    a(f'v_and_b32 {v(T2)}, 1, {v(W)}')
    a(f'v_lshl_add_u32 {v(SO)}, {v(T2)}, 3, {v(SO)}')
    a(f's_lshr_b32 s19, s16, 6')
    a(f's_lshl_b32 s19, s19, 11')
    a(f's_and_b32 s24, s16, 63')
    a(f's_lshl_b32 s24, s24, 4')
    a(f's_add_u32 s24, s24, s19')
    for r in range(1, 4):
        a(f's_add_u32 s{24+r}, s24, {r*16*8192}')
    a('s_waitcnt vmcnt(2)')
    for z in range(2):
        mfma16(a, DR + 4*z, X + 4*z, B1R + 4*z, None)
        mfma16(a, DI + 4*z, X + 4*z, B1I + 4*z, None)
    a('s_waitcnt vmcnt(0)')
    for k in range(8):
        a(f'v_lshlrev_b32 {v(WR+k)}, 16, {v(WL+k)}')
        a(f'v_and_b32 {v(WI+k)}, 0xffff0000, {v(WL+k)}')

    def pack(z):
        for r in range(4):
            cvtpk(a, X + 4*z + r, (RR + 4*z + r, 0), (RI + 4*z + r, 0))
    for z in range(2):
        cmul(a, RR + 4*z, RI + 4*z, DR + 4*z, DI + 4*z, T1C + 4*z, T1S + 4*z, 0)
        pack(z)
        mfma16(a, DR + 4*z, F2R, X + 4*z, None)
        mfma16(a, DI + 4*z, F2I, X + 4*z, None)
    for z in range(2):
        cmul(a, RR + 4*z, RI + 4*z, DR + 4*z, DI + 4*z, WR + 4*z, WI + 4*z, 1)
        pack(z)
        mfma16(a, DR + 4*z, X + 4*z, F3R, None)
        mfma16(a, DI + 4*z, X + 4*z, F3I, None)
    for z in range(2):
        cmul(a, RR + 4*z, RI + 4*z, DR + 4*z, DI + 4*z, T2C + 4*z, T2S + 4*z, 1)
        pack(z)
        mfma16(a, DR + 4*z, A4R + 4*z, X + 4*z, None)
        mfma16(a, DI + 4*z, A4I + 4*z, X + 4*z, None)
    for z in range(2):
        for r in range(4):
            cvtpk(a, OUT + 2*r + z, (DR + 4*z + r, 0), (DI + 4*z + r, 0))
    for r in range(4):
        a(f'buffer_store_dwordx2 {v(OUT+2*r,2)}, {v(SO)}, s[12:15], s{24+r} offen')
    a('s_endpgm')
    return 184


def p3(a, layer):
    I, Q, W, VO, T0, T1, T2, T3, FI, FQ, XO, NO = 1, 2, 3, 4, 5, 6, 7, 8, 9, 10, 11, 12
    VD = 16
    XL = 48
    BAR, BAI = 56, 64
    TC, TS = 72, 88
    BB = 104
    DR, DI = 168, 184
    RR, RI = 16, 32
    FB = 200
    Y = 216
    TMP = 168
    ST = 232
    O1, O2 = 104, 112
    a(f's_load_dwordx2 s[6:7], s[0:1], {KA_WS}')
    if layer == 0:
        a(f's_load_dwordx2 s[4:5], s[0:1], {KA_X}')
    xcd_swizzle(a, 16)
    lane_ids(a, I, Q, W)
    a(f'v_and_b32 {v(T0)}, 63, v0')
    a(f'v_lshlrev_b32 {v(VO)}, 4, {v(T0)}')
    a(f'v_lshrrev_b32 {v(T0)}, 1, {v(Q)}')
    a(f'v_lshl_add_u32 {v(T0)}, {v(W)}, 1, {v(T0)}')
    a(f'v_lshlrev_b32 {v(XO)}, 18, {v(T0)}')
    a(f'v_lshl_add_u32 {v(XO)}, {v(I)}, 4, {v(XO)}')
    a(f'v_and_b32 {v(T1)}, 1, {v(Q)}')
    a(f'v_lshl_add_u32 {v(XO)}, {v(T1)}, 3, {v(XO)}')
    a(f'v_lshlrev_b32 {v(NO)}, 10, {v(I)}')
    a(f'v_lshl_add_u32 {v(NO)}, {v(T1)}, 9, {v(NO)}')
    a(f'v_lshl_add_u32 {v(NO)}, {v(T0)}, 4, {v(NO)}')
    a(f's_lshl_b32 s17, s16, 13')
    a(f's_add_u32 s18, s17, 4096')
    a(f's_lshl_b32 s19, s16, 10')
    a(f's_waitcnt lgkmcnt(0)')
    srd(a, 8, 6, WS_V, SZ_2M)
    for k in range(8):
        a(f'buffer_load_dwordx4 {v(VD+4*k,4)}, {v(VO)}, s[8:11], s{17 + (k >> 2)} offen offset:{1024*(k & 3)}')
    if layer == 0:
        srd(a, 12, 4, 0, SZ_2M)
    else:
        srd(a, 12, 6, WS_X2, SZ_2M)
    for nt in range(4):
        a(f'buffer_load_dwordx2 {v(XL+2*nt,2)}, {v(XO)}, s[12:15], s19 offen offset:{256*nt}')
    srd(a, 20, 6, WS_X1, SZ_2M)
    srd(a, 24, 6, WS_XN, SZ_2M)
    a(f's_lshr_b32 s28, s16, 2')
    a(f's_lshl_b32 s28, s28, 15')
    a(f's_and_b32 s29, s16, 3')
    a(f's_lshl_b32 s29, s29, 7')
    a(f's_add_u32 s28, s28, s29')
    a(f's_add_u32 s29, s28, 16384')
    a(f'v_cvt_f32_u32 {v(FI)}, {v(I)}')
    a(f'v_cvt_f32_u32 {v(FQ)}, {v(Q)}')
    a(f'v_lshrrev_b32 {v(T0)}, 3, {v(I)}')
    a(f'v_lshl_add_u32 {v(T0)}, {v(W)}, 1, {v(T0)}')
    a(f'v_cvt_f32_u32 {v(T0)}, {v(T0)}')
    a(f'v_mul_f32 {v(T0)}, {f32(1/8)}, {v(T0)}')
    a(f'v_and_b32 {v(T1)}, 7, {v(I)}')
    a(f'v_cvt_f32_u32 {v(T1)}, {v(T1)}')
    a(f'v_mul_f32 {v(T2)}, {v(T1)}, {v(FQ)}')
    a(f'v_mul_f32 {v(T3)}, {f32(1/8)}, {v(T2)}')
    for k in range(8):
        angle(a, TMP + k, T0, k, T3)
    for k in range(8):
        a(f'v_sin_f32 {v(TMP+8+k)}, {v(TMP+k)}')
        a(f'v_cos_f32 {v(TMP+k)}, {v(TMP+k)}')
    for k in range(8):
        cvtpk(a, BAR + k, (TMP + k, 0), (TMP + 8 + k, 1))
        cvtpk(a, BAI + k, (TMP + 8 + k, 0), (TMP + k, 0))
    a(f'v_mul_f32 {v(T0)}, {f32(1/512)}, {v(T1)}')
    a(f'v_mul_f32 {v(T3)}, {f32(1/128)}, {v(T2)}')
    for mt in range(4):
        for r in range(4):
            angle(a, TC + 4*mt + r, T0, 16*mt + r, T3)
    a(f'v_cmp_eq_u32 vcc, 0, {v(Q)}')
    a(f'v_mul_f32 {v(T1)}, 0.5, {v(T1)}')
    a(f'v_cndmask_b32 {v(TC)}, {v(TC)}, {v(T1)}, vcc')
    for k in range(16):
        a(f'v_sin_f32 {v(TS+k)}, {v(TC+k)}')
        a(f'v_cos_f32 {v(TC+k)}, {v(TC+k)}')
    a(f'v_mul_f32 {v(T0)}, {f32(1/64)}, {v(FI)}')
    a(f'v_mul_f32 {v(T3)}, {v(FI)}, {v(FQ)}')
    a(f'v_mul_f32 {v(T3)}, {f32(1/16)}, {v(T3)}')
    for mt in range(2):
        for r in range(4):
            angle(a, TMP + 4*mt + r, T0, 16*mt + r, T3)
    for k in range(8):
        a(f'v_sin_f32 {v(TMP+8+k)}, {v(TMP+k)}')
        a(f'v_cos_f32 {v(TMP+k)}, {v(TMP+k)}')
    a(f'v_and_b32 {v(T2)}, 1, {v(I)}')
    a(f's_mov_b32 s30, 0x80008000')
    a(f'v_mul_lo_u32 {v(T2)}, {v(T2)}, s30')
    for mt in range(2):
        for nt in range(4):
            for r in range(4):
                c, sn = rot(TMP + 4*mt + r, TMP + 8 + 4*mt + r, nt*r)
                cvtpk(a, BB + 16*mt + 4*nt + r, c, (sn[0], 1 - sn[1]))
    for k in range(32):
        a(f'v_xor_b32 {v(BB+32+k)}, {v(BB+k)}, {v(T2)}')
    for mt in range(4):
        a(f's_waitcnt vmcnt({4 + 6 - 2*mt})')
        for t in range(2):
            mfma16(a, DR + 4*mt, VD + 8*mt + 4*t, BAR + 4*t, None if t == 0 else DR + 4*mt)
            mfma16(a, DI + 4*mt, VD + 8*mt + 4*t, BAI + 4*t, None if t == 0 else DI + 4*mt)
    a('s_waitcnt vmcnt(0)')
    for nt in range(4):
        for h in range(2):
            a(f'v_lshlrev_b32 {v(Y+4*nt+2*h)}, 16, {v(XL+2*nt+h)}')
            a(f'v_and_b32 {v(Y+4*nt+2*h+1)}, 0xffff0000, {v(XL+2*nt+h)}')
    for mt in range(4):
        cmul(a, RR + 4*mt, RI + 4*mt, DR + 4*mt, DI + 4*mt, TC + 4*mt, TS + 4*mt, 1)
        for r in range(4):
            cvtpk(a, FB + 4*mt + r, (RR + 4*mt + r, 0), (RI + 4*mt + r, 0))
        for nt in range(4):
            mfma16(a, Y + 4*nt, FB + 4*mt, BB + 16*mt + 4*nt, Y + 4*nt)
    for k in range(8):
        cvtpk(a, O1 + k, (Y + 2*k, 0), (Y + 2*k + 1, 0))
    for nt in range(4):
        a(f'buffer_store_dwordx2 {v(O1+2*nt,2)}, {v(XO)}, s[20:23], s19 offen offset:{256*nt}')
    a(f'v_pk_add_f32 {v(ST,2)}, {v(Y,2)}, {v(Y+2,2)}')
    a(f'v_pk_mul_f32 {v(ST+2,2)}, {v(Y,2)}, {v(Y,2)}')
    a(f'v_pk_fma_f32 {v(ST+2,2)}, {v(Y+2,2)}, {v(Y+2,2)}, {v(ST+2,2)}')
    for k in range(2, 8):
        a(f'v_pk_add_f32 {v(ST,2)}, {v(ST,2)}, {v(Y+2*k,2)}')
        a(f'v_pk_fma_f32 {v(ST+2,2)}, {v(Y+2*k,2)}, {v(Y+2*k,2)}, {v(ST+2,2)}')
    a(f'v_add_f32 {v(ST)}, {v(ST)}, {v(ST+1)}')
    a(f'v_add_f32 {v(ST+2)}, {v(ST+2)}, {v(ST+3)}')
    for sh in (8, 4, 2, 1):
        a(f'v_add_f32_dpp {v(ST)}, {v(ST)}, {v(ST)} row_ror:{sh} row_mask:0xf bank_mask:0xf')
        a(f'v_add_f32_dpp {v(ST+2)}, {v(ST+2)}, {v(ST+2)} row_ror:{sh} row_mask:0xf bank_mask:0xf')
    a(f'v_mov_b32 {v(ST+1)}, {v(ST)}')
    a(f'v_mov_b32 {v(ST+3)}, {v(ST+2)}')
    a(f'v_permlane16_swap_b32 {v(ST)}, {v(ST+1)}')
    a(f'v_permlane16_swap_b32 {v(ST+2)}, {v(ST+3)}')
    a(f'v_add_f32 {v(ST)}, {v(ST)}, {v(ST+1)}')
    a(f'v_add_f32 {v(ST+2)}, {v(ST+2)}, {v(ST+3)}')
    a(f'v_mul_f32 {v(ST)}, {f32(1/512)}, {v(ST)}')
    a(f'v_mul_f32 {v(ST+2)}, {f32(1/512)}, {v(ST+2)}')
    a(f'v_fma_f32 {v(ST+2)}, -{v(ST)}, {v(ST)}, {v(ST+2)}')
    a(f'v_max_f32 {v(ST+2)}, 0, {v(ST+2)}')
    a(f'v_add_f32 {v(ST+2)}, {f32(1e-5)}, {v(ST+2)}')
    a(f'v_rsq_f32 {v(ST+2)}, {v(ST+2)}')
    a(f'v_mul_f32 {v(ST+3)}, -{v(ST)}, {v(ST+2)}')
    for k in range(8):
        a(f'v_pk_fma_f32 {v(Y+2*k,2)}, {v(Y+2*k,2)}, {v(ST+2,2)}, {v(ST+2,2)} op_sel:[0,0,1] op_sel_hi:[1,0,1]')
    for k in range(8):
        cvtpk(a, O2 + k, (Y + 2*k, 0), (Y + 2*k + 1, 0))
    for u in range(2):
        a(f'buffer_store_dwordx4 {v(O2+4*u,4)}, {v(NO)}, s[24:27], s{28+u} offen')
    a('s_endpgm')
    return 244


G1_SLOT = 28 * 1024
G1_NSLOT = 5


def gemm1(a):
    LN16, T0, RD = 1, 2, 3
    ACT = 0
    ACC = 8
    WF = 120
    OUT = 152
    D = 6
    a(f's_load_dwordx2 s[6:7], s[0:1], {KA_WS}')
    a(f'v_and_b32 {v(T0)}, 63, v0')
    a(f'v_lshlrev_b32 {v(LN16)}, 4, {v(T0)}')
    a(f'v_lshrrev_b32 {v(T0)}, 6, v0')
    a(f'v_readfirstlane_b32 s16, {v(T0)}')
    a('s_and_b32 s17, s2, 7')
    a('s_lshl_b32 s17, s17, 1')
    a('s_bfe_u32 s18, s2, 0x10003')
    a('s_add_u32 s17, s17, s18')
    a('s_lshr_b32 s18, s2, 4')
    a('s_lshl_b32 s17, s17, 2')
    a('s_add_u32 s17, s17, s16')
    a('s_lshl_b32 s19, s17, 15')
    a('s_mul_i32 s20, s18, 229376')
    a('s_mul_i32 s21, s16, 7168')
    a('s_add_u32 s20, s20, s21')
    a('s_mul_i32 s22, s17, 114688')
    a('s_mul_i32 s23, s18, 7168')
    a('s_add_u32 s22, s22, s23')
    a('s_add_u32 s23, s22, 4096')
    a('s_waitcnt lgkmcnt(0)')
    srd(a, 8, 6, WS_XN, SZ_2M)
    srd(a, 12, 6, WS_WGU, SZ_WGU)
    srd(a, 24, 6, WS_H, SZ_H)

    vm = []
    for g in range(8):
        ops = []
        for k in range(4):
            ks = 4*g + k
            pre = [f's_add_u32 s28, s19, {4096*g}'] if k == 0 else []
            ops.append(pre + [f'buffer_load_dwordx4 {ar(ACT+4*ks,4)}, {v(LN16)}, s[8:11], s28 offen offset:{1024*k}'])
        for k in range(7):
            pre = []
            if k in (0, 4):
                pre = [f's_add_u32 s29, s20, {G1_SLOT*g + 1024*k}',
                       f's_add_u32 m0, s21, {G1_SLOT*(g % G1_NSLOT) + 1024*k}']
            ops.append(pre + [f'buffer_load_dwordx4 {v(LN16)}, s[12:15], s29 offen offset:{1024*(k & 3)} lds'])
        vm.append(ops)
    flat = [(g, op) for g in range(8) for op in vm[g]]
    issued = 0

    def issue(n, maxg):
        nonlocal issued
        for _ in range(n):
            if issued < len(flat) and flat[issued][0] <= maxg:
                for t in flat[issued][1]:
                    a(t)
                issued += 1

    def wait_group(g):
        n = issued - 11*(g + 1)
        assert n >= 0, (g, issued)
        a(f's_waitcnt vmcnt({min(n, 63)})')
        a('s_barrier')

    order = []
    for g in range(7):
        for k in range(4):
            for nb in range(7):
                order.append((4*g + k, nb))
    for nb in range(7):
        for k in range(4):
            order.append((28 + k, nb))
    N = len(order)

    def lds_off(n):
        ks, nb = order[n]
        g = ks >> 2
        return G1_SLOT*(g % G1_NSLOT) + ((ks & 3)*7 + nb)*1024

    def dsread(n):
        off = lds_off(n)
        base = RD + (off >> 16)
        a(f'ds_read_b128 {v(WF+4*(n % 8),4)}, {v(base)} offset:{off & 0xffff}')

    a(f'v_mov_b32 {v(RD)}, {v(LN16)}')
    a(f'v_add_u32 {v(RD+1)}, 0x10000, {v(LN16)}')
    a(f'v_add_u32 {v(RD+2)}, 0x20000, {v(LN16)}')
    issue(22, 1)
    wait_group(0)
    for n in range(D):
        dsread(n)
    started = set()
    pending_epi = []
    passed = 0

    def epilogue(nb):
        TMPV = ACC + 16*nb
        ops = []
        o = OUT + 4*(nb & 1)
        for e in range(8):
            ops.append(f'v_max_f32 {v(TMPV+e)}, 0, {v(TMPV+e)}')
        for e in range(0, 8, 2):
            ops.append(f'v_pk_mul_f32 {v(TMPV+e,2)}, {v(TMPV+e,2)}, {v(TMPV+8+e,2)}')
        for e in range(4):
            ops.append(f'v_cvt_pk_bf16_f32 {v(o+e)}, {v(TMPV+2*e)}, {v(TMPV+2*e+1)}')
        ops.append(f'buffer_store_dwordx4 {v(o,4)}, {v(LN16)}, s[24:27], s{22 + (nb >> 2)} offen offset:{1024*(nb & 3)}')
        return ops

    for n in range(N):
        ks, nb = order[n]
        if n + D < N:
            g2 = order[n + D][0] >> 2
            if g2 > passed:
                wait_group(g2)
                passed = g2
            dsread(n + D)
        rem = min(D, N - 1 - n)
        a(f's_waitcnt lgkmcnt({rem})')
        c = '0' if nb not in started else v(ACC + 16*nb, 16)
        started.add(nb)
        a(f'v_mfma_f32_32x32x16_bf16 {v(ACC+16*nb,16)}, {v(WF+4*(n % 8),4)}, {ar(ACT+4*ks,4)}, {c}')
        if n % 2 == 0:
            issue(1, max(4, passed + 3))
        if ks == 31 and nb > 0:
            pending_epi += epilogue(nb - 1)
        for _ in range(5):
            if pending_epi and ks >= 28:
                a(pending_epi.pop(0))
    assert issued == len(flat)
    for t in pending_epi + epilogue(6):
        a(t)
    a('s_endpgm')
    return 160, 128


def gemm2(a, layer):
    LN16, T0, T1, XO, LW, LR = 1, 2, 3, 4, 5, 6
    RING = 16
    DEPTH = 12
    XR = 208
    ACC = 0
    S = 16
    a(f's_load_dwordx2 s[6:7], s[0:1], {KA_WS}')
    if layer == 1:
        a(f's_load_dwordx2 s[4:5], s[0:1], {KA_OUT}')
    a(f'v_and_b32 {v(T0)}, 63, v0')
    a(f'v_lshlrev_b32 {v(LN16)}, 4, {v(T0)}')
    a(f'v_lshrrev_b32 {v(T1)}, 6, v0')
    a(f'v_readfirstlane_b32 s16, {v(T1)}')
    a('s_and_b32 s17, s2, 7')
    a('s_lshl_b32 s17, s17, 2')
    a('s_bfe_u32 s18, s2, 0x20003')
    a('s_add_u32 s17, s17, s18')
    a('s_lshr_b32 s18, s2, 5')
    a('s_mul_i32 s19, s16, 28672')
    a('s_mul_i32 s20, s17, 229376')
    a('s_add_u32 s20, s20, s19')
    a('s_add_u32 s21, s20, 114688')
    a('s_mul_i32 s22, s18, 229376')
    a('s_add_u32 s22, s22, s19')
    a('s_add_u32 s23, s22, 114688')
    a('s_waitcnt lgkmcnt(0)')
    srd(a, 8, 6, WS_H, SZ_H)
    srd(a, 12, 6, WS_WD, SZ_WD)

    def loads(k):
        base = RING + 16*(k % DEPTH)
        if k and k % 4 == 0:
            for r in range(20, 24):
                a(f's_add_u32 s{r}, s{r}, 4096')
        off = 1024*(k & 3)
        a(f'buffer_load_dwordx4 {v(base,4)}, {v(LN16)}, s[12:15], s22 offen offset:{off}')
        a(f'buffer_load_dwordx4 {v(base+8,4)}, {v(LN16)}, s[8:11], s20 offen offset:{off}')
        a(f'buffer_load_dwordx4 {v(base+4,4)}, {v(LN16)}, s[12:15], s23 offen offset:{off}')
        a(f'buffer_load_dwordx4 {v(base+12,4)}, {v(LN16)}, s[8:11], s21 offen offset:{off}')
    for k in range(DEPTH - 1):
        loads(k)
    srd(a, 24, 6, WS_X1, SZ_2M)
    if layer == 1:
        srd(a, 28, 4, 0, SZ_2M)
    else:
        srd(a, 28, 6, WS_X2, SZ_2M)
    a(f'v_and_b32 {v(XO)}, 7, v0')
    a(f'v_lshlrev_b32 {v(XO)}, 18, {v(XO)}')
    a(f'v_bfe_u32 {v(T1)}, v0, 3, 2')
    a(f'v_lshl_add_u32 {v(XO)}, {v(T1)}, 10, {v(XO)}')
    a(f'v_bfe_u32 {v(T1)}, v0, 5, 1')
    a(f'v_lshl_add_u32 {v(XO)}, {v(T1)}, 5, {v(XO)}')
    a('s_lshl_b32 s32, s17, 13')
    a('s_lshr_b32 s33, s16, 1')
    a('s_lshl_b32 s33, s33, 12')
    a('s_add_u32 s32, s32, s33')
    a('s_lshl_b32 s33, s18, 7')
    a('s_add_u32 s32, s32, s33')
    a('s_and_b32 s33, s16, 1')
    a('s_lshl_b32 s33, s33, 6')
    a('s_add_u32 s32, s32, s33')
    a('s_lshl_b32 s33, s16, 14')
    a(f'v_add_u32 {v(LW)}, s33, {v(LN16)}')
    a('s_lshl_b32 s33, s16, 12')
    a(f'v_add_u32 {v(LR)}, s33, {v(LN16)}')
    xissued = False
    for k in range(28):
        extra = 0
        if k + DEPTH - 1 < 28:
            loads(k + DEPTH - 1)
            n = 4*(DEPTH - 1)
        else:
            if not xissued:
                a(f'buffer_load_dwordx4 {v(XR,4)}, {v(XO)}, s[24:27], s32 offen')
                a(f'buffer_load_dwordx4 {v(XR+4,4)}, {v(XO)}, s[24:27], s32 offen offset:16')
                xissued = True
            n = 4*(27 - k) + 2
        a(f's_waitcnt vmcnt({n})')
        base = RING + 16*(k % DEPTH)
        for b_ in range(2):
            for a_ in range(2):
                t = 2*b_ + a_
                c = '0' if k == 0 else ar(16*t, 16)
                a(f'v_mfma_f32_32x32x16_bf16 {ar(16*t,16)}, {v(base+4*a_,4)}, {v(base+8+4*b_,4)}, {c}')
    for t in range(4):
        for g in range(4):
            a(f'ds_write_b128 {v(LW)}, {ar(16*t+4*g,4)} offset:{4096*t + 1024*g}')
    a('s_waitcnt lgkmcnt(0)')
    a('s_barrier')
    for w in range(4):
        for g in range(4):
            a(f'ds_read_b128 {v(S+16*w+4*g,4)}, {v(LR)} offset:{16384*w + 1024*g}')
    a('s_waitcnt vmcnt(0)')
    X = S + 64
    for k in range(8):
        a(f'v_lshlrev_b32 {v(X+2*k)}, 16, {v(XR+k)}')
        a(f'v_and_b32 {v(X+2*k+1)}, 0xffff0000, {v(XR+k)}')
    for w in range(4):
        a(f's_waitcnt lgkmcnt({12 - 4*w})')
        for k in range(8):
            a(f'v_pk_add_f32 {v(X+2*k,2)}, {v(X+2*k,2)}, {v(S+16*w+2*k,2)}')
    for k in range(8):
        cvtpk(a, XR + k, (X + 2*k, 0), (X + 2*k + 1, 0))
    a(f'buffer_store_dwordx4 {v(XR,4)}, {v(XO)}, s[28:31], s32 offen')
    a(f'buffer_store_dwordx4 {v(XR+4,4)}, {v(XO)}, s[28:31], s32 offen offset:16')
    a('s_endpgm')
    return 216, 64


def transpose8(a, IN, OUT, slo, shi):
    for f in range(8):
        for jj in range(4):
            a(f'v_perm_b32 {v(OUT+4*f+jj)}, {v(IN+4*(2*jj+1)+(f>>1))}, {v(IN+4*(2*jj)+(f>>1))}, s{shi if f & 1 else slo}')


def prep_w(a, sb):
    COL, T0, T1, CONJ, DO = 1, 2, 3, 4, 5
    AD, RE, IM = 8, 16, 24
    a(f's_load_dwordx4 s[8:11], s[0:1], {KA_WR}')
    a(f's_load_dwordx2 s[6:7], s[0:1], {KA_WS}')
    a(f'v_and_b32 {v(T0)}, 63, v0')
    a(f'v_lshrrev_b32 {v(T1)}, 6, v0')
    a(f'v_cmp_eq_u32 vcc, 0, {v(T0)}')
    a(f'v_lshlrev_b32 {v(COL)}, 6, {v(T1)}')
    a(f'v_sub_u32 {v(CONJ)}, 256, {v(COL)}')
    a(f'v_cndmask_b32 {v(COL)}, v0, {v(CONJ)}, vcc')
    a(f'v_lshlrev_b32 {v(COL)}, 1, {v(COL)}')
    a(f'v_cmp_ne_u32 s[12:13], 0, {v(T1)}')
    a('s_and_b64 vcc, vcc, s[12:13]')
    a(f'v_mov_b32 {v(CONJ)}, 0x80000000')
    a(f'v_cndmask_b32 {v(CONJ)}, 0, {v(CONJ)}, vcc')
    a(f'v_lshrrev_b32 {v(DO)}, 4, {v(T0)}')
    a(f'v_lshlrev_b32 {v(DO)}, 6, {v(DO)}')
    a(f'v_lshl_add_u32 {v(DO)}, {v(T1)}, 4, {v(DO)}')
    a(f'v_and_b32 {v(T0)}, 15, {v(T0)}')
    a(f'v_add_u32 {v(DO)}, {v(DO)}, {v(T0)}')
    a(f'v_lshlrev_b32 {v(DO)}, 13, {v(DO)}')
    a(f's_lshr_b32 s14, {s(sb)}, 6')
    a('s_lshl_b32 s14, s14, 1')
    a(f's_and_b32 s15, {s(sb)}, 15')
    a('s_lshl_b32 s15, s15, 3')
    a('s_add_u32 s14, s14, s15')
    a(f's_bfe_u32 s15, {s(sb)}, 0x20004')
    a('s_lshl_b32 s15, s15, 9')
    a('s_add_u32 s14, s14, s15')
    for z in range(2):
        for r in range(4):
            k = 4*z + r
            a(f's_add_u32 s15, s14, {z + 128*r}')
            a('s_sub_u32 s16, 2048, s15')
            a('s_and_b32 s16, s16, 2047')
            a('s_mul_i32 s15, s15, 514')
            a('s_mul_i32 s16, s16, 514')
            a(f'v_mov_b32 {v(T0)}, s15')
            a(f'v_mov_b32 {v(T1)}, s16')
            a(f'v_cndmask_b32 {v(AD+k)}, {v(T0)}, {v(T1)}, vcc')
            a(f'v_add_u32 {v(AD+k)}, {v(AD+k)}, {v(COL)}')
    a(f's_lshl_b32 s17, {s(sb)}, 5')
    a('s_waitcnt lgkmcnt(0)')
    srd(a, 20, 8, 0, 2048*514)
    srd(a, 24, 10, 0, 2048*514)
    srd(a, 28, 6, WS_WP, SZ_2M)
    for k in range(8):
        a(f'buffer_load_ushort {v(RE+k)}, {v(AD+k)}, s[20:23], 0 offen')
        a(f'buffer_load_ushort {v(IM+k)}, {v(AD+k)}, s[24:27], 0 offen')
    a('s_waitcnt vmcnt(0)')
    for k in range(8):
        a(f'v_lshl_or_b32 {v(RE+k)}, {v(IM+k)}, 16, {v(RE+k)}')
        a(f'v_xor_b32 {v(RE+k)}, {v(RE+k)}, {v(CONJ)}')
    a(f'buffer_store_dwordx4 {v(RE,4)}, {v(DO)}, s[28:31], s17 offen')
    a(f'buffer_store_dwordx4 {v(RE+4,4)}, {v(DO)}, s[28:31], s17 offen offset:16')
    a('s_endpgm')


def prep_wgu(a, sb):
    T0, T1, T2, VO, DO = 1, 2, 3, 4, 5
    IN, OUT = 8, 40
    a(f's_load_dwordx4 s[8:11], s[0:1], {KA_WG}')
    a(f's_load_dwordx2 s[6:7], s[0:1], {KA_WS}')
    a(f'v_lshrrev_b32 {v(T0)}, 6, v0')
    a(f'v_readfirstlane_b32 s12, {v(T0)}')
    a(f's_lshl_b32 s13, {s(sb)}, 2')
    a('s_add_u32 s12, s12, s13')
    a('s_cmp_ge_u32 s12, 224')
    a('s_cselect_b32 s13, 1, 0')
    a('s_mul_i32 s14, s13, 224')
    a('s_sub_u32 s12, s12, s14')
    a('s_mul_i32 s14, s12, 9363')
    a('s_lshr_b32 s14, s14, 16')
    a('s_mul_i32 s15, s14, 7')
    a('s_sub_u32 s15, s12, s15')
    a('s_lshr_b32 s16, s14, 4')
    a('s_lshl_b32 s16, s16, 8')
    a('s_and_b32 s17, s14, 15')
    a('s_lshl_b32 s17, s17, 3')
    a('s_add_u32 s16, s16, s17')
    a('s_mul_i32 s16, s16, 3584')
    a('s_lshl_b32 s17, s15, 9')
    a('s_add_u32 s16, s16, s17')
    a(f'v_bfe_u32 {v(T0)}, v0, 5, 1')
    a(f'v_and_b32 {v(T1)}, 31, v0')
    a(f'v_mul_u32_u24 {v(VO)}, {4*3584}, {v(T0)}')
    a(f'v_lshl_add_u32 {v(VO)}, {v(T1)}, 4, {v(VO)}')
    a('s_waitcnt lgkmcnt(0)')
    a('s_cmp_eq_u32 s13, 1')
    a('s_cselect_b32 s20, s10, s8')
    a('s_cselect_b32 s21, s11, s9')
    a(f's_mov_b32 s22, {512*3584}')
    a('s_mov_b32 s23, 0x20000')
    for e in range(8):
        a(f's_add_u32 s17, s16, {(128*(e >> 2) + (e & 3))*3584}')
        a(f'buffer_load_dwordx4 {v(IN+4*e,4)}, {v(VO)}, s[20:23], s17 offen')
    srd(a, 24, 6, WS_WGU, SZ_WGU)
    a('s_lshl_b32 s17, s15, 5')
    a(f'v_add_u32 {v(T1)}, s17, {v(T1)}')
    a(f'v_lshrrev_b32 {v(T2)}, 1, {v(T1)}')
    a(f'v_mul_u32_u24 {v(DO)}, 9363, {v(T2)}')
    a(f'v_lshrrev_b32 {v(DO)}, 16, {v(DO)}')
    a(f'v_mul_u32_u24 {v(VO)}, 7, {v(DO)}')
    a(f'v_sub_u32 {v(T2)}, {v(T2)}, {v(VO)}')
    a(f'v_mul_u32_u24 {v(DO)}, 229376, {v(DO)}')
    a(f'v_lshl_add_u32 {v(DO)}, {v(T2)}, 10, {v(DO)}')
    a(f'v_lshl_add_u32 {v(DO)}, {v(T0)}, 9, {v(DO)}')
    a(f'v_and_b32 {v(T1)}, 1, {v(T1)}')
    a(f'v_lshl_add_u32 {v(DO)}, {v(T1)}, 6, {v(DO)}')
    a('s_mul_i32 s17, s14, 7168')
    a('s_lshl_b32 s13, s13, 8')
    a('s_add_u32 s17, s17, s13')
    a('s_mov_b32 s18, 0x05040100')
    a('s_mov_b32 s19, 0x07060302')
    a('s_waitcnt vmcnt(0)')
    transpose8(a, IN, OUT, 18, 19)
    for f in range(8):
        a(f'buffer_store_dwordx4 {v(OUT+4*f,4)}, {v(DO)}, s[24:27], s17 offen offset:{128*(f >> 2) + 16*(f & 3)}')
    a('s_endpgm')


def prep_wd(a, sb):
    T0, T1, VO, DO = 1, 2, 4, 5
    IN, OUT = 8, 40
    a(f's_load_dwordx2 s[8:9], s[0:1], {KA_WD}')
    a(f's_load_dwordx2 s[6:7], s[0:1], {KA_WS}')
    a(f'v_lshrrev_b32 {v(T0)}, 6, v0')
    a(f'v_readfirstlane_b32 s12, {v(T0)}')
    a(f's_lshl_b32 s13, {s(sb)}, 2')
    a('s_add_u32 s12, s12, s13')
    a('s_lshl_b32 s16, s12, 13')
    a('s_add_u32 s17, s16, 4096')
    a(f'v_and_b32 {v(T0)}, 63, v0')
    a(f'v_lshlrev_b32 {v(VO)}, 4, {v(T0)}')
    a('s_waitcnt lgkmcnt(0)')
    srd(a, 20, 8, 0, 1792*1024)
    for e in range(8):
        a(f'buffer_load_dwordx4 {v(IN+4*e,4)}, {v(VO)}, s[20:23], s{16 + (e >> 2)} offen offset:{1024*(e & 3)}')
    srd(a, 24, 6, WS_WD, SZ_WD)
    a(f'v_lshrrev_b32 {v(T1)}, 2, {v(T0)}')
    a(f'v_mul_u32_u24 {v(DO)}, 114688, {v(T1)}')
    a(f'v_and_b32 {v(T1)}, 1, {v(T0)}')
    a(f'v_lshl_add_u32 {v(DO)}, {v(T1)}, 8, {v(DO)}')
    a(f'v_bfe_u32 {v(T1)}, {v(T0)}, 1, 1')
    a(f'v_lshl_add_u32 {v(DO)}, {v(T1)}, 6, {v(DO)}')
    a('s_lshl_b32 s17, s12, 9')
    a('s_mov_b32 s18, 0x05040100')
    a('s_mov_b32 s19, 0x07060302')
    a('s_waitcnt vmcnt(0)')
    transpose8(a, IN, OUT, 18, 19)
    for f in range(8):
        a(f'buffer_store_dwordx4 {v(OUT+4*f,4)}, {v(DO)}, s[24:27], s17 offen offset:{128*(f >> 2) + 16*(f & 3)}')
    a('s_endpgm')


def kernel_head(a, name):
    a.raw(f'.globl {name}\n.p2align 8\n.type {name},@function')
    a(f'{name}:')


def descriptor(name, vg, ag=0, sg=48):
    acc = (vg + 3) // 4 * 4
    return f""".amdhsa_kernel {name}
  .amdhsa_next_free_vgpr {acc + ag if ag else vg}
  .amdhsa_next_free_sgpr {sg}
  .amdhsa_accum_offset {acc}
  .amdhsa_group_segment_fixed_size 0
  .amdhsa_kernarg_size 80
  .amdhsa_user_sgpr_count 2
  .amdhsa_user_sgpr_kernarg_segment_ptr 1
  .amdhsa_system_sgpr_workgroup_id_x 1
.end_amdhsa_kernel
"""


def build(extra_dummy=0):
    a = Asm()
    descs = []
    launches = []

    def guard(n, lab):
        a(f's_cmp_ge_u32 s2, {n}')
        a(f's_cbranch_scc1 {lab}')

    kernel_head(a, 'p1a_kernel')
    guard(256, 'L_p1a_x')
    vg = p1(a, 0)
    a('L_p1a_x:')
    guard(512, 'L_exit1')
    a('s_sub_u32 s40, s2, 256')
    prep_w(a, 40)
    a('L_exit1:')
    a('s_endpgm')
    descs.append(descriptor('p1a_kernel', vg))
    kernel_head(a, 'p2a_kernel')
    guard(256, 'L_p2a_x')
    a('L_p2_body:')
    vg = p2(a)
    a('L_p2a_x:')
    guard(256 + 112, 'L_exit2')
    a('s_sub_u32 s40, s2, 256')
    prep_wgu(a, 40)
    a('L_exit2:')
    a('s_endpgm')
    descs.append(descriptor('p2a_kernel', vg))
    kernel_head(a, 'p2b_kernel')
    guard(256, 'L_exit2b')
    a('s_branch L_p2_body')
    a('L_exit2b:')
    a('s_endpgm')
    descs.append(descriptor('p2b_kernel', vg))
    kernel_head(a, 'p3a_kernel')
    guard(256, 'L_p3a_x')
    vg = p3(a, 0)
    a('L_p3a_x:')
    guard(256 + 56, 'L_exit3')
    a('s_sub_u32 s40, s2, 256')
    prep_wd(a, 40)
    a('L_exit3:')
    a('s_endpgm')
    descs.append(descriptor('p3a_kernel', vg))
    kernel_head(a, 'g1_kernel')
    guard(256, 'L_exit4')
    vg, ag = gemm1(a)
    a('L_exit4:')
    a('s_endpgm')
    descs.append(descriptor('g1_kernel', vg, ag))
    for layer, nm in ((0, 'g2a_kernel'), (1, 'g2b_kernel')):
        kernel_head(a, nm)
        guard(256, 'L_exit_' + nm)
        vg, ag = gemm2(a, layer)
        a(f'L_exit_{nm}:')
        a('s_endpgm')
        descs.append(descriptor(nm, vg, ag))
    kernel_head(a, 'p1b_kernel')
    guard(256, 'L_exit6')
    vg = p1(a, 1)
    a('L_exit6:')
    a('s_endpgm')
    descs.append(descriptor('p1b_kernel', vg))
    kernel_head(a, 'p3b_kernel')
    guard(256, 'L_exit8')
    vg = p3(a, 1)
    a('L_exit8:')
    a('s_endpgm')
    descs.append(descriptor('p3b_kernel', vg))
    if extra_dummy:
        kernel_head(a, 'dummy_kernel')
        a('s_endpgm')
        descs.append(descriptor('dummy_kernel', 8))
    g1l = G1_SLOT * G1_NSLOT
    launches = [('p1a_kernel', 512, 0), ('p2a_kernel', 368, 0), ('p3a_kernel', 312, 0), ('g1_kernel', 256, g1l),
                ('g2a_kernel', 256, 65536), ('p1b_kernel', 256, 0), ('p2b_kernel', 256, 0), ('p3b_kernel', 256, 0),
                ('g1_kernel', 256, g1l), ('g2b_kernel', 256, 65536)]
    launches += [('dummy_kernel', 256, 0)] * extra_dummy
    head = ''.join(f'; @launch kernel={k} grid=({g},1,1) block=(256,1,1) lds={l}\n' for k, g, l in launches)
    txt = head + '.amdgcn_target "amdgcn-amd-amdhsa--gfx950"\n.text\n' + a.finalize()
    txt += '.section .rodata,"a"\n' + ''.join('.p2align 6\n' + d for d in descs)
    return txt


if __name__ == '__main__':
    out = sys.argv[1] if len(sys.argv) > 1 else f'cdna_kernels/{NAME}.s'
    extra = int(sys.argv[2]) if len(sys.argv) > 2 else 0
    open(out, 'w').write(build(extra))
    print('wrote', out)
```

```python
import struct, sys
from asmlib import Asm

NAME = 'interleave_layers__spectral_gfnet__glu_gated_reglu__prompt'

O_U, O_X1, O_V, O_XN, WS_X2, O_H = 0x0, 0x200000, 0x400000, 0x600000, 0x800000, 0xA00000
CLR_BASE, CLR_SIZE = 0x400000, 0xD00000
WS_WP, WS_WGU, WS_WD, WS_TOTAL = 0x1200000, 0x1400000, 0x1800000, 0x1A00000
WS_STAMP = 0x4000000
SZ_2M = 0x200000
KA_X, KA_WR, KA_WI, KA_WG, KA_WU, KA_WD, KA_OUT, KA_DBG, KA_WS = 0, 8, 16, 32, 40, 48, 56, 64, 72
RING = 144
LDS_A, LDS_B = RING * 1024, RING * 1024 + 8192
LDS_TOTAL = RING * 1024 + 16384
HL6 = 40
ACT0 = 12
W0A = 80
WD_P3 = 12
CUT1, CUT2, CUT3 = 50, 45, 40
K1F = ''
CLRB = 51
CLRF = ''
PA = 3
SPIN_LIMIT = 100000
STAMP = False
EXP = set()

S_WS, S_X, S_DST = 8, 12, 16
S_RHO, S_WAVE, S_LAYER, S_SPIN, S_S2 = 20, 21, 22, 24, 25
V_I, V_Q, V_W, V_FI, V_FQ, V_LN16, V_T16, V_ROWO = 1, 2, 3, 4, 5, 6, 7, 8
T0, T1, T2, T3, T4, T5, T6 = 9, 10, 11, 12, 13, 14, 15
A_WP, A_XR = 224, 232


def v(i, n=1):
    return f'v{i}' if n == 1 else f'v[{i}:{i+n-1}]'


def s(i, n=1):
    return f's{i}' if n == 1 else f's[{i}:{i+n-1}]'


def ar(i, n=1):
    return f'a{i}' if n == 1 else f'a[{i}:{i+n-1}]'


def f32(x):
    return '0x%08x' % struct.unpack('<I', struct.pack('<f', x))[0]


class L(list):
    def __call__(self, t):
        self.append(t)


def emit(a, lst):
    for t in lst:
        a(t)


def merge(main, side):
    out = L()
    n, m = len(main), len(side)
    j = 0
    for i, t in enumerate(main):
        while j < m and j * n <= i * m:
            out.extend(side[j])
            j += 1
        out(t)
    while j < m:
        out.extend(side[j])
        j += 1
    return out


def srd(a, dst, base, off, size):
    if off:
        a(f's_add_u32 {s(dst)}, {s(base)}, 0x{off:x}')
        a(f's_addc_u32 {s(dst+1)}, {s(base+1)}, 0')
    else:
        a(f's_mov_b32 {s(dst)}, {s(base)}')
        a(f's_mov_b32 {s(dst+1)}, {s(base+1)}')
    a(f's_mov_b32 {s(dst+2)}, 0x{size:x}')
    a(f's_mov_b32 {s(dst+3)}, 0x20000')


NST = 14


def stamp(a, k):
    if STAMP and ('g1st' not in EXP or k == 0):
        assert k < NST
        a(f's_memrealtime s[{64+2*k}:{65+2*k}]')


_gs = [0]


def gstamp(a, name):
    if STAMP and 'g1st' in EXP:
        _gs[0] += 1
        print('stamp', _gs[0], name)
        a(f's_memrealtime s[{64+2*_gs[0]}:{65+2*_gs[0]}]')
        a('s_waitcnt lgkmcnt(0)')


def dump_stamps(a, sreg_slot):
    if not STAMP:
        return
    a('s_waitcnt lgkmcnt(0)')
    srd(a, 92, 6, WS_STAMP, 1 << 20)
    a(f's_lshl_b32 s96, {s(sreg_slot)}, 17')
    a('s_lshl_b32 s97, s2, 8')
    a('s_add_u32 s96, s96, s97')
    a('v_lshrrev_b32 v32, 6, v0')
    a('v_lshlrev_b32 v32, 6, v32')
    for k in range(16):
        a(f'v_mov_b32 v{16+k}, ' + (f's{64+2*k}' if k < NST else (s(S_SPIN) if k == 15 else '0')))
    a('s_mov_b64 exec, 1')
    for k in range(4):
        a(f'buffer_store_dwordx4 v[{16+4*k}:{19+4*k}], v32, s[92:95], s96 offen offset:{16*k}')
    a('s_mov_b64 exec, -1')
    a('s_nop 1')


def mfma16(a, d, x, y, c):
    cc = '0' if c is None else v(c, 4)
    a(f'v_mfma_f32_16x16x32_bf16 {v(d,4)}, {v(x,4)}, {v(y,4)}, {cc}')


def angle(a, dst, step, k, base):
    if base is None:
        if k == 0:
            a(f'v_mov_b32 {v(dst)}, 0')
        else:
            a(f'v_mul_f32 {v(dst)}, {f32(k)}, {v(step)}')
    elif k == 0:
        a(f'v_mov_b32 {v(dst)}, {v(base)}')
    elif k == 1:
        a(f'v_add_f32 {v(dst)}, {v(step)}, {v(base)}')
    else:
        a(f'v_fmamk_f32 {v(dst)}, {v(step)}, {f32(k)}, {v(base)}')


def sgn(x, neg):
    return ('-' if neg else '') + v(x)


def rot(c, sn, k):
    k &= 3
    return [((c, 0), (sn, 0)), ((sn, 1), (c, 0)), ((c, 1), (sn, 1)), ((sn, 0), (c, 1))][k]


def neg(x):
    return (x[0], 1 - x[1])


def cvtpk(a, d, lo, hi):
    a(f'v_cvt_pk_bf16_f32 {v(d)}, {sgn(*lo)}, {sgn(*hi)}')


def sincos(a, ang, sn, n):
    for k in range(n):
        a(f'v_sin_f32 {v(sn+k)}, {v(ang+k)}')
        a(f'v_cos_f32 {v(ang+k)}, {v(ang+k)}')


def cmul(a, R, Im, re, im, c, sn, conj):
    for h in (0, 2):
        a(f'v_pk_mul_f32 {v(R+h,2)}, {v(re+h,2)}, {v(c+h,2)}')
        a(f'v_pk_mul_f32 {v(Im+h,2)}, {v(im+h,2)}, {v(c+h,2)}')
    ng = 'neg_lo:[1,0,0] neg_hi:[1,0,0]'
    for h in (0, 2):
        a(f'v_pk_fma_f32 {v(R+h,2)}, {v(im+h,2)}, {v(sn+h,2)}, {v(R+h,2)} {ng if conj else ""}')
        a(f'v_pk_fma_f32 {v(Im+h,2)}, {v(re+h,2)}, {v(sn+h,2)}, {v(Im+h,2)} {"" if conj else ng}')


_lab = [0]


def label(p):
    _lab[0] += 1
    return f'L_{p}_{_lab[0]}'


def tag(a, reg):
    a(f'v_bfi_b32 {v(reg)}, 1, {s(S_LAYER)}, {v(reg)}')


def poll_check(a, loads, regs, tmp, sentinel=False):
    chk, ok = label('chk'), label('ok')
    a(f'{chk}:')
    r = list(regs)
    if sentinel:
        a(f'v_max_u32 {v(tmp)}, {v(r[0])}, {v(r[1])}')
        a(f'v_cmp_eq_u32 vcc, -1, {v(tmp)}')
    else:
        a(f'v_bitop3_b32 {v(tmp)}, {v(r[0])}, {v(r[1])}, {s(S_LAYER)} bitop3:0x7e')
        if len(r) == 4:
            a(f'v_bitop3_b32 {v(tmp+1)}, {v(r[2])}, {v(r[3])}, {s(S_LAYER)} bitop3:0x7e')
            a(f'v_or_b32 {v(tmp)}, {v(tmp)}, {v(tmp+1)}')
        a(f'v_and_b32 {v(tmp)}, 1, {v(tmp)}')
        a(f'v_cmp_ne_u32 vcc, 0, {v(tmp)}')
    a(f's_cbranch_vccz {ok}')
    a(f's_add_u32 {s(S_SPIN)}, {s(S_SPIN)}, 1')
    a(f's_cmp_gt_u32 {s(S_SPIN)}, {SPIN_LIMIT}')
    a(f's_cbranch_scc1 {ok}')
    emit(a, loads)
    a('s_waitcnt vmcnt(0)')
    a(f's_branch {chk}')
    a(f'{ok}:')


def common_setup(a):
    a(f's_bfe_u32 {s(S_RHO)}, s2, 0x20001')
    a(f's_lshl_b32 {s(S_RHO)}, {s(S_RHO)}, 6')
    a('s_lshr_b32 s3, s2, 6')
    a('s_lshl_b32 s3, s3, 4')
    a(f's_add_u32 {s(S_RHO)}, {s(S_RHO)}, s3')
    a('s_and_b32 s3, s2, 1')
    a('s_lshl_b32 s3, s3, 3')
    a(f's_add_u32 {s(S_RHO)}, {s(S_RHO)}, s3')
    a('s_bfe_u32 s3, s2, 0x30003')
    a(f's_add_u32 {s(S_RHO)}, {s(S_RHO)}, s3')
    a(f's_and_b32 {s(S_S2)}, {s(S_RHO)}, 15')
    a(f's_lshl_b32 {s(S_S2)}, {s(S_S2)}, 4')
    a(f's_lshr_b32 s3, {s(S_RHO)}, 4')
    a(f's_add_u32 {s(S_S2)}, {s(S_S2)}, s3')
    a(f'v_and_b32 {v(V_I)}, 15, v0')
    a(f'v_bfe_u32 {v(V_Q)}, v0, 4, 2')
    a(f'v_lshrrev_b32 {v(V_W)}, 6, v0')
    a(f'v_and_b32 {v(T0)}, 63, v0')
    a(f'v_readfirstlane_b32 {s(S_WAVE)}, {v(V_W)}')
    a(f'v_lshlrev_b32 {v(V_LN16)}, 4, {v(T0)}')
    a(f'v_lshlrev_b32 {v(V_T16)}, 4, v0')
    a(f'v_lshrrev_b32 {v(T0)}, 5, v0')
    a(f'v_lshlrev_b32 {v(V_ROWO)}, 18, {v(T0)}')
    a(f'v_and_b32 {v(T0)}, 31, v0')
    a(f'v_lshl_add_u32 {v(V_ROWO)}, {v(T0)}, 4, {v(V_ROWO)}')
    a(f'v_cvt_f32_u32 {v(V_FI)}, {v(V_I)}')
    a(f'v_cvt_f32_u32 {v(V_FQ)}, {v(V_Q)}')
    a(f's_mov_b32 {s(S_SPIN)}, 0')
    a(f's_mov_b32 {s(S_LAYER)}, 0')


class P1R:
    LD = 16
    A = 24
    BC, BS = 56, 64
    DRE, DIM = 72, 88
    TC, TS = 104, 108
    TW = 112
    C2, S2, N2 = 144, 160, 176
    ST = 192
    WA, RA, XA, SA, MASK0, ONES = 208, 209, 210, 211, 212, 213
    TRE, TIM = 24, 40
    FRE, FIM = 56, 64
    D2R, D2I = 72, 80
    OUT = 88
    TMP = 72
    NV = 214


def p1_consts(ldsa, ldsb):
    R = P1R
    a = L()
    TMP = R.TMP
    a(f'v_lshrrev_b32 {v(T0)}, 5, v0')
    a(f'v_and_b32 {v(T1)}, 1, {v(T0)}')
    a(f'v_lshlrev_b32 {v(T1)}, 3, {v(T1)}')
    a(f'v_and_b32 {v(T2)}, 31, v0')
    a(f'v_xor_b32 {v(T1)}, {v(T1)}, {v(T2)}')
    a(f'v_lshlrev_b32 {v(T1)}, 4, {v(T1)}')
    a(f'v_lshl_add_u32 {v(R.WA)}, {v(T0)}, 10, {v(T1)}')
    a(f'v_add_u32 {v(R.WA)}, {ldsa}, {v(R.WA)}')
    a(f'v_lshrrev_b32 {v(T0)}, 2, {v(V_I)}')
    a(f'v_lshl_add_u32 {v(T0)}, {v(V_Q)}, 2, {v(T0)}')
    a(f'v_bfe_u32 {v(T1)}, {v(V_I)}, 1, 1')
    a(f'v_lshlrev_b32 {v(T2)}, 3, {v(T1)}')
    a(f'v_xor_b32 {v(T0)}, {v(T0)}, {v(T2)}')
    a(f'v_lshlrev_b32 {v(T0)}, 4, {v(T0)}')
    a(f'v_lshl_add_u32 {v(T0)}, {v(T1)}, 10, {v(T0)}')
    a(f'v_and_b32 {v(T1)}, 1, {v(V_I)}')
    a(f'v_lshl_add_u32 {v(R.RA)}, {v(T1)}, 3, {v(T0)}')
    a(f'v_add_u32 {v(R.RA)}, {ldsa}, {v(R.RA)}')
    a(f'v_lshrrev_b32 {v(T0)}, 1, {v(V_Q)}')
    a(f'v_lshlrev_b32 {v(T1)}, 3, {v(T0)}')
    a(f'v_xor_b32 {v(T1)}, {v(T1)}, {v(V_I)}')
    a(f'v_lshlrev_b32 {v(T1)}, 4, {v(T1)}')
    a(f'v_lshl_add_u32 {v(T2)}, {v(V_W)}, 1, {v(T0)}')
    a(f'v_lshl_add_u32 {v(T1)}, {v(T2)}, 10, {v(T1)}')
    a(f'v_and_b32 {v(T2)}, 1, {v(V_Q)}')
    a(f'v_lshl_add_u32 {v(R.XA)}, {v(T2)}, 3, {v(T1)}')
    a(f'v_add_u32 {v(R.XA)}, {ldsa}, {v(R.XA)}')
    a(f'v_lshlrev_b32 {v(T1)}, 4, {v(V_Q)}')
    a(f'v_lshl_add_u32 {v(R.SA)}, {v(V_W)}, 2, {v(T1)}')
    a(f'v_add_u32 {v(R.SA)}, {ldsb}, {v(R.SA)}')
    a(f'v_lshlrev_b32 {v(T6)}, 5, {v(T0)}')
    a(f'v_add_u32 {v(T6)}, {ldsb}, {v(T6)}')
    a(f'v_mov_b32 {v(R.ONES)}, 0x3f803f80')
    a(f'v_lshl_add_u32 {v(T3)}, {v(V_W)}, 4, {v(V_I)}')
    a(f'v_cvt_f32_u32 {v(T0)}, {v(T3)}')
    a(f'v_mul_f32 {v(T1)}, {f32(1/64)}, {v(T0)}')
    a(f'v_mul_f32 {v(T2)}, {v(T0)}, {v(V_FQ)}')
    a(f'v_mul_f32 {v(T2)}, {f32(1/16)}, {v(T2)}')
    for e in range(8):
        angle(a, TMP + e, T1, 16*(e >> 2) + (e & 3), T2)
    sincos(a, TMP, TMP + 8, 8)
    a(f'v_and_b32 {v(T4)}, 1, {v(V_I)}')
    a('s_mov_b32 s28, 0x80008000')
    a(f'v_mul_lo_u32 {v(T4)}, {v(T4)}, s28')
    for j in range(4):
        cvtpk(a, R.BC + j, (TMP + 2*j, 0), (TMP + 2*j + 1, 0))
        cvtpk(a, R.BS + j, (TMP + 8 + 2*j, 1), (TMP + 8 + 2*j + 1, 1))
    for j in range(4):
        a(f'v_xor_b32 {v(R.BC+4+j)}, {v(R.BC+j)}, {v(T4)}')
        a(f'v_xor_b32 {v(R.BS+4+j)}, {v(R.BS+j)}, {v(T4)}')
    a(f'v_cmp_eq_u32 vcc, 0, {v(T3)}')
    a(f'v_mov_b32 {v(T1)}, {f32(256.0)}')
    a(f'v_mov_b32 {v(T2)}, {f32(-0.125)}')
    a(f'v_cndmask_b32 {v(T0)}, {v(T0)}, {v(T1)}, vcc')
    a(f'v_cndmask_b32 {v(R.MASK0)}, 0, {v(T2)}, vcc')
    a(f'v_mul_f32 {v(T0)}, {f32(1/512)}, {v(T0)}')
    a(f'v_and_b32 {v(T1)}, 1, {v(V_Q)}')
    a(f'v_cvt_f32_u32 {v(T5)}, {v(T1)}')
    a(f'v_mul_f32 {v(T1)}, {v(T5)}, {v(T0)}')
    a(f'v_mul_f32 {v(T1)}, 4.0, {v(T1)}')
    for r in range(4):
        angle(a, R.TC + r, T0, r, T1)
    sincos(a, R.TC, R.TS, 4)
    a(f'v_and_b32 {v(T0)}, 7, {v(V_I)}')
    a(f'v_cvt_f32_u32 {v(T0)}, {v(T0)}')
    a(f'v_mul_f32 {v(T0)}, {f32(1/8)}, {v(T0)}')
    a(f'v_lshrrev_b32 {v(T1)}, 3, {v(V_I)}')
    a(f'v_cvt_f32_u32 {v(T1)}, {v(T1)}')
    a(f'v_mul_f32 {v(T1)}, {f32(1/8)}, {v(T1)}')
    a(f'v_lshrrev_b32 {v(T2)}, 1, {v(V_Q)}')
    a(f'v_cvt_f32_u32 {v(T2)}, {v(T2)}')
    a(f'v_mul_f32 {v(T2)}, {v(T2)}, {v(T0)}')
    a(f'v_mul_f32 {v(T5)}, {v(T5)}, {v(T1)}')
    a(f'v_fmamk_f32 {v(T2)}, {v(T5)}, {f32(4.0)}, {v(T2)}')
    a(f'v_fmamk_f32 {v(T3)}, {v(T0)}, {f32(2.0)}, {v(T2)}')
    for mt in range(2):
        for r in range(4):
            angle(a, TMP + 4*mt + r, T1, r, T3 if mt else T2)
    sincos(a, TMP, TMP + 8, 8)
    for m in range(2):
        for jj in range(4):
            mt, r0 = jj >> 1, 2*(jj & 1)
            k0 = 4*mt + r0
            c0, s0 = rot(TMP + k0, TMP + 8 + k0, r0*m)
            c1, s1 = rot(TMP + k0 + 1, TMP + 8 + k0 + 1, (r0 + 1)*m)
            o = 8*m + jj
            cvtpk(a, R.C2 + o, c0, c1)
            cvtpk(a, R.S2 + o, s0, s1)
            cvtpk(a, R.N2 + o, neg(s0), neg(s1))
    for m in range(2):
        for jj in range(4):
            o = 8*m + jj
            for B in (R.C2, R.S2, R.N2):
                a(f'v_xor_b32 {v(B+o+4)}, {v(B+o)}, {v(T4)}')
    return a


def p1_body(a, ssoff, flags, keep_res, side=()):
    R = P1R
    for k in range(2):
        a(f'ds_write_b128 {v(R.WA)}, {v(R.LD+4*k,4)} offset:{512*k}')
    a('s_waitcnt lgkmcnt(0)')
    a('s_barrier')
    for mt in range(4):
        for t in range(2):
            for h in range(2):
                a(f'ds_read_b64_tr_b16 {v(R.A+8*mt+4*t+2*h,2)}, {v(R.RA)} offset:{2048*mt+512*t+256*h}')
    ST = R.ST
    a(f'v_mov_b32 {v(ST)}, 0')
    a(f'v_mov_b32 {v(ST+1)}, 0')
    for k in range(8):
        a(f'v_dot2c_f32_bf16 {v(ST)}, {v(R.LD+k)}, {v(R.ONES)}')
        a(f'v_dot2c_f32_bf16 {v(ST+1)}, {v(R.LD+k)}, {v(R.LD+k)}')
    for mt in range(4):
        a(f's_waitcnt lgkmcnt({12 - 4*mt})')
        for t in range(2):
            fr = R.A + 8*mt + 4*t
            mfma16(a, R.DRE + 4*mt, fr, R.BC + 4*t, None if t == 0 else R.DRE + 4*mt)
            mfma16(a, R.DIM + 4*mt, fr, R.BS + 4*t, None if t == 0 else R.DIM + 4*mt)
        if mt == 0:
            a(f'v_permlane16_swap_b32 {v(ST)}, {v(ST+1)}')
            a(f'v_add_f32 {v(ST)}, {v(ST)}, {v(ST+1)}')
        if mt == 1:
            for sh in (8, 4):
                a(f'v_add_f32_dpp {v(ST)}, {v(ST)}, {v(ST)} row_ror:{sh} row_mask:0xf bank_mask:0xf')
        if mt == 2:
            for sh in (2, 1):
                a(f'v_add_f32_dpp {v(ST)}, {v(ST)}, {v(ST)} row_ror:{sh} row_mask:0xf bank_mask:0xf')
    a(f'ds_write_b32 {v(R.SA)}, {v(ST)}')
    if keep_res:
        for nt in range(4):
            a(f'ds_read_b64 {ar(A_XR+2*nt,2)}, {v(R.XA)} offset:{256*nt}')
    a('s_waitcnt lgkmcnt(0)')
    a('s_barrier')
    a(f'ds_read_b128 {v(ST,4)}, {v(T6)}')
    a(f'ds_read_b128 {v(ST+4,4)}, {v(T6)} offset:16')
    for g in side:
        emit(a, g)
    a('s_waitcnt lgkmcnt(0)')
    a(f's_mov_b32 s28, {f32(1/512)}')
    a(f's_mov_b32 s29, {f32(1e-5)}')
    for k in range(4):
        a(f'v_mul_f32 {v(ST+8+k)}, {v(ST+k)}, {v(R.MASK0)}')
    for k in range(4):
        a(f'v_mul_f32 {v(ST+k)}, s28, {v(ST+k)}')
        a(f'v_mul_f32 {v(ST+4+k)}, s28, {v(ST+4+k)}')
    for k in range(4):
        a(f'v_fma_f32 {v(ST+4+k)}, -{v(ST+k)}, {v(ST+k)}, {v(ST+4+k)}')
    for k in range(4):
        a(f'v_max_f32 {v(ST+4+k)}, 0, {v(ST+4+k)}')
    for k in range(4):
        a(f'v_add_f32 {v(ST+4+k)}, s29, {v(ST+4+k)}')
    for k in range(4):
        a(f'v_rsq_f32 {v(ST+4+k)}, {v(ST+4+k)}')
    for u in range(2):
        for mt in (2*u, 2*u + 1):
            z = mt & 1
            sel = f'op_sel:[0,{z}] op_sel_hi:[1,{z}]'
            for h in (0, 2):
                a(f'v_pk_add_f32 {v(R.DRE+4*mt+h,2)}, {v(R.DRE+4*mt+h,2)}, {v(ST+8+2*u,2)} {sel}')
            for k in range(4):
                a(f'v_pk_mul_f32 {v(R.TW+8*mt+2*k,2)}, {v(R.TC+2*k,2)}, {v(ST+4+2*u,2)} {sel}')
            cmul(a, R.TRE + 4*mt, R.TIM + 4*mt, R.DRE + 4*mt, R.DIM + 4*mt, R.TW + 8*mt, R.TW + 8*mt + 4, 0)
        for jj in range(4):
            k = 8*u + 2*jj
            cvtpk(a, R.FRE + 4*u + jj, (R.TRE + k, 0), (R.TRE + k + 1, 0))
            cvtpk(a, R.FIM + 4*u + jj, (R.TIM + k, 0), (R.TIM + k + 1, 0))
    for u in range(2):
        for m in range(2):
            o = 8*m + 4*u
            mfma16(a, R.D2R + 4*m, R.C2 + o, R.FRE + 4*u, None if u == 0 else R.D2R + 4*m)
            mfma16(a, R.D2I + 4*m, R.C2 + o, R.FIM + 4*u, None if u == 0 else R.D2I + 4*m)
        for m in range(2):
            o = 8*m + 4*u
            mfma16(a, R.D2R + 4*m, R.S2 + o, R.FIM + 4*u, R.D2R + 4*m)
            mfma16(a, R.D2I + 4*m, R.N2 + o, R.FRE + 4*u, R.D2I + 4*m)
    for m in range(2):
        for r in range(4):
            cvtpk(a, R.OUT + 4*m + r, (R.D2R + 4*m + r, 0), (R.D2I + 4*m + r, 0))
        tag(a, R.OUT + 4*m)
        a(f'buffer_store_dwordx4 {v(R.OUT+4*m,4)}, {v(V_LN16)}, {s(S_WS,4)}, {s(ssoff)} offen offset:{1024*m} {flags}')


class P2R:
    LD = 16
    X = 24
    WR, WI = 32, 40
    B1R, B1I = 48, 56
    T1C, T1S = 64, 72
    F2R, F2I, F3R, F3I = 80, 84, 88, 92
    T2C, T2S = 96, 104
    A4R, A4I = 112, 120
    DR, DI = 128, 136
    RR, RI = 144, 152
    TMP = 160
    OUT = 168
    GA, LA, FA, FQ4 = 176, 177, 178, 179


def p2_addr():
    R = P2R
    a = L()
    a(f'v_lshlrev_b32 {v(R.GA)}, 13, v0')
    a(f's_lshr_b32 s30, {s(S_RHO)}, 4')
    a('s_lshl_b32 s30, s30, 9')
    a(f's_and_b32 s31, {s(S_RHO)}, 15')
    a('s_lshl_b32 s31, s31, 4')
    a('s_add_u32 s30, s30, s31')
    return a


def p2_loads():
    R = P2R
    return [f'buffer_load_dwordx4 {v(R.LD+4*h,4)}, {v(R.GA)}, {s(S_WS,4)}, s30 offen offset:{256*h} sc1' for h in range(2)]


def p2_consts():
    R = P2R
    a = L()
    TMP = R.TMP
    a(f'v_lshlrev_b32 {v(R.LA)}, 2, v0')
    a(f'v_add_u32 {v(R.LA)}, {LDS_A}, {v(R.LA)}')
    a(f'v_lshlrev_b32 {v(R.FA)}, 11, {v(V_W)}')
    a(f'v_lshl_add_u32 {v(R.FA)}, {v(V_I)}, 6, {v(R.FA)}')
    a(f'v_lshl_add_u32 {v(R.FA)}, {v(V_Q)}, 4, {v(R.FA)}')
    a(f'v_add_u32 {v(R.FA)}, {LDS_A}, {v(R.FA)}')
    a(f'v_mul_f32 {v(R.FQ4)}, 4.0, {v(V_FQ)}')
    a(f's_mov_b32 s29, {f32(2.0**-19)}')
    a(f's_cmp_eq_u32 {s(S_RHO)}, 0\ns_cselect_b32 s29, {f32(2.0**-20)}, s29')
    for z in range(2):
        a(f'v_lshlrev_b32 {v(T0)}, 1, {v(V_W)}')
        a(f'v_lshl_add_u32 {v(T0)}, {v(V_I)}, 3, {v(T0)}')
        if z:
            a(f'v_add_u32 {v(T0)}, 1, {v(T0)}')
        a(f'v_cvt_f32_u32 {v(T0)}, {v(T0)}')
        a(f'v_mul_f32 {v(T0)}, {f32(1/128)}, {v(T0)}')
        a(f'v_mul_f32 {v(T1)}, {v(T0)}, {v(R.FQ4)}')
        for r in range(4):
            angle(a, TMP + r, T0, r, T1)
        for r in range(4):
            a(f'v_mul_f32 {v(R.T1C+4*z+r)}, {f32(1/16)}, {v(TMP+r)}')
        sincos(a, TMP, TMP + 4, 4)
        sincos(a, R.T1C + 4*z, R.T1S + 4*z, 4)
        for r in range(4):
            cvtpk(a, R.B1R + 4*z + r, (TMP + r, 0), (TMP + 4 + r, 0))
            cvtpk(a, R.B1I + 4*z + r, (TMP + 4 + r, 1), (TMP + r, 0))
    a(f'v_mul_f32 {v(T0)}, {f32(1/16)}, {v(V_FI)}')
    a(f'v_mul_f32 {v(T1)}, {v(T0)}, {v(R.FQ4)}')
    for r in range(4):
        angle(a, TMP + r, T0, r, T1)
    sincos(a, TMP, TMP + 4, 4)
    a('v_nop')
    for r in range(4):
        cvtpk(a, R.F2R + r, (TMP + r, 0), (TMP + 4 + r, 0))
        cvtpk(a, R.F2I + r, (TMP + 4 + r, 1), (TMP + r, 0))
        cvtpk(a, R.F3R + r, (TMP + r, 0), (TMP + 4 + r, 1))
        cvtpk(a, R.F3I + r, (TMP + 4 + r, 0), (TMP + r, 0))
    for z in range(2):
        a(f'v_lshlrev_b32 {v(T2)}, 1, {v(V_W)}')
        a(f'v_lshl_add_u32 {v(T2)}, {v(V_Q)}, 5, {v(T2)}')
        if z:
            a(f'v_add_u32 {v(T2)}, 1, {v(T2)}')
        a(f'v_cvt_f32_u32 {v(T2)}, {v(T2)}')
        a(f'v_mul_f32 {v(T2)}, {v(T2)}, {v(V_FI)}')
        a(f'v_mul_f32 {v(T2)}, {f32(1/128)}, {v(T2)}')
        for r in range(4):
            angle(a, TMP + r, T0, r, T2)
        for r in range(4):
            a(f'v_mul_f32 {v(R.T2C+4*z+r)}, {f32(1/16)}, {v(TMP+r)}')
        sincos(a, TMP, TMP + 4, 4)
        sincos(a, R.T2C + 4*z, R.T2S + 4*z, 4)
        for r in range(4):
            cvtpk(a, R.A4R + 4*z + r, (TMP + r, 0), (TMP + 4 + r, 1))
            cvtpk(a, R.A4I + 4*z + r, (TMP + 4 + r, 0), (TMP + r, 0))
        for r in range(4):
            a(f'v_mul_f32 {v(R.T2C+4*z+r)}, s29, {v(R.T2C+4*z+r)}')
            a(f'v_mul_f32 {v(R.T2S+4*z+r)}, s29, {v(R.T2S+4*z+r)}')
    a(f's_lshl_b32 s31, {s(S_RHO)}, 13')
    a(f's_add_u32 s31, s31, {O_V}')
    a('s_add_u32 s32, s31, 4096')
    return a


def p2_unpack_w():
    R = P2R
    a = L()
    for k in range(8):
        a(f'v_accvgpr_read_b32 {v(R.WI+k)}, {ar(A_WP+k)}')
    for k in range(8):
        a(f'v_lshlrev_b32 {v(R.WR+k)}, 16, {v(R.WI+k)}')
        a(f'v_and_b32 {v(R.WI+k)}, 0xffff0000, {v(R.WI+k)}')
    return a


def p2_body(a):
    R = P2R
    for k in range(4):
        a(f'ds_write2st64_b32 {v(R.LA)}, {v(R.LD+2*k)}, {v(R.LD+2*k+1)} offset0:{8*k} offset1:{8*k+4}')
    a('s_waitcnt lgkmcnt(0)')
    a('s_barrier')
    for z in range(2):
        a(f'ds_read_b128 {v(R.X+4*z,4)}, {v(R.FA)} offset:{1024*z}')
    emit(a, p2_unpack_w())
    a('s_waitcnt lgkmcnt(0)')
    for z in range(2):
        mfma16(a, R.DR + 4*z, R.X + 4*z, R.B1R + 4*z, None)
        mfma16(a, R.DI + 4*z, R.X + 4*z, R.B1I + 4*z, None)

    def pack(z):
        for r in range(4):
            cvtpk(a, R.X + 4*z + r, (R.RR + 4*z + r, 0), (R.RI + 4*z + r, 0))
    for z in range(2):
        cmul(a, R.RR + 4*z, R.RI + 4*z, R.DR + 4*z, R.DI + 4*z, R.T1C + 4*z, R.T1S + 4*z, 0)
        pack(z)
        mfma16(a, R.DR + 4*z, R.F2R, R.X + 4*z, None)
        mfma16(a, R.DI + 4*z, R.F2I, R.X + 4*z, None)
    for z in range(2):
        cmul(a, R.RR + 4*z, R.RI + 4*z, R.DR + 4*z, R.DI + 4*z, R.WR + 4*z, R.WI + 4*z, 1)
        pack(z)
        mfma16(a, R.DR + 4*z, R.X + 4*z, R.F3R, None)
        mfma16(a, R.DI + 4*z, R.X + 4*z, R.F3I, None)
    for z in range(2):
        cmul(a, R.RR + 4*z, R.RI + 4*z, R.DR + 4*z, R.DI + 4*z, R.T2C + 4*z, R.T2S + 4*z, 1)
        pack(z)
        mfma16(a, R.DR + 4*z, R.A4R + 4*z, R.X + 4*z, None)
        mfma16(a, R.DI + 4*z, R.A4I + 4*z, R.X + 4*z, None)
    for z in range(2):
        for r in range(4):
            cvtpk(a, R.OUT + 4*z + r, (R.DR + 4*z + r, 0), (R.DI + 4*z + r, 0))
        a(f'ds_write_b128 {v(R.FA)}, {v(R.OUT+4*z,4)} offset:{8192+1024*z}')
    a('s_waitcnt lgkmcnt(0)')
    a('s_barrier')
    for k in range(4):
        a(f'ds_read2st64_b32 {v(R.LD+2*k,2)}, {v(R.LA)} offset0:{32+8*k} offset1:{32+8*k+4}')
    for h in range(2):
        a(f's_waitcnt lgkmcnt({2-2*h})')
        tag(a, R.LD + 4*h)
        a(f'buffer_store_dwordx4 {v(R.LD+4*h,4)}, {v(V_T16)}, {s(S_WS,4)}, s{31+h} offen sc1')


class P3R:
    LD = 24
    VD = 32
    BAR, BAI = 64, 72
    TC, TS = 80, 96
    BB = 112
    DR, DI = 176, 192
    RR, RI = 32, 48
    FB = 208
    Y = 224
    TMP = 176
    ST = 240
    O1, O2 = 112, 120
    GA, WA, RA, NW, NR, NO = 244, 245, 246, 247, 248, 249


def p3_addr():
    R = P3R
    a = L()
    a(f'v_lshlrev_b32 {v(R.GA)}, 13, v0')
    a(f's_lshl_b32 s33, {s(S_RHO)}, 4')
    a(f's_add_u32 s33, s33, {O_V}')
    a('s_add_u32 s34, s33, 4096')
    return a


def p3_loads():
    R = P3R
    return [f'buffer_load_dwordx4 {v(R.LD+4*h,4)}, {v(R.GA)}, {s(S_WS,4)}, s{33+h} offen sc1' for h in range(2)]


def p3_consts():
    R = P3R
    a = L()
    TMP = R.TMP
    a(f'v_add_u32 {v(R.RA)}, {LDS_A}, {v(V_LN16)}')
    a(f'v_lshl_add_u32 {v(R.WA)}, {v(V_W)}, 11, {v(R.RA)}')
    a(f'v_lshrrev_b32 {v(T0)}, 5, v0')
    a(f'v_and_b32 {v(T1)}, 7, v0')
    a(f'v_xor_b32 {v(T0)}, {v(T0)}, {v(T1)}')
    a(f'v_lshlrev_b32 {v(T0)}, 4, {v(T0)}')
    a(f'v_and_b32 {v(T2)}, 31, v0')
    a(f'v_lshl_add_u32 {v(R.NW)}, {v(T2)}, 7, {v(T0)}')
    a(f'v_add_u32 {v(R.NW)}, {LDS_B}, {v(R.NW)}')
    a(f'v_lshrrev_b32 {v(T0)}, 3, v0')
    a(f'v_and_b32 {v(T2)}, 7, {v(T0)}')
    a(f'v_xor_b32 {v(T2)}, {v(T2)}, {v(T1)}')
    a(f'v_lshlrev_b32 {v(T2)}, 4, {v(T2)}')
    a(f'v_lshl_add_u32 {v(R.NR)}, {v(T0)}, 7, {v(T2)}')
    a(f'v_add_u32 {v(R.NR)}, {LDS_B}, {v(R.NR)}')
    a(f'v_lshlrev_b32 {v(T1)}, 4, {v(T1)}')
    a(f'v_lshl_add_u32 {v(R.NO)}, {v(T0)}, 9, {v(T1)}')
    a(f's_lshr_b32 s35, {s(S_RHO)}, 2')
    a('s_lshl_b32 s35, s35, 15')
    a(f's_and_b32 s36, {s(S_RHO)}, 3')
    a('s_lshl_b32 s36, s36, 7')
    a('s_add_u32 s35, s35, s36')
    a(f's_add_u32 s35, s35, {O_XN}')
    a('s_add_u32 s36, s35, 16384')
    a(f's_lshl_b32 s37, {s(S_S2)}, 10')
    a(f's_add_u32 s37, s37, {O_X1}')
    a(f'v_lshrrev_b32 {v(T0)}, 3, {v(V_I)}')
    a(f'v_lshl_add_u32 {v(T0)}, {v(V_W)}, 1, {v(T0)}')
    a(f'v_cvt_f32_u32 {v(T0)}, {v(T0)}')
    a(f'v_mul_f32 {v(T0)}, {f32(1/8)}, {v(T0)}')
    a(f'v_and_b32 {v(T1)}, 7, {v(V_I)}')
    a(f'v_cvt_f32_u32 {v(T1)}, {v(T1)}')
    a(f'v_mul_f32 {v(T2)}, {v(T1)}, {v(V_FQ)}')
    a(f'v_mul_f32 {v(T3)}, {f32(1/8)}, {v(T2)}')
    for k in range(8):
        angle(a, TMP + k, T0, k, T3)
    sincos(a, TMP, TMP + 8, 8)
    a(f'v_mul_f32 {v(T0)}, {f32(1/512)}, {v(T1)}')
    for k in range(8):
        cvtpk(a, R.BAR + k, (TMP + k, 0), (TMP + 8 + k, 1))
        cvtpk(a, R.BAI + k, (TMP + 8 + k, 0), (TMP + k, 0))
    a(f'v_mul_f32 {v(T3)}, {f32(1/128)}, {v(T2)}')
    for mt in range(4):
        for r in range(4):
            angle(a, R.TC + 4*mt + r, T0, 16*mt + r, T3)
    a(f'v_cmp_eq_u32 vcc, 0, {v(V_Q)}')
    a(f'v_mul_f32 {v(T1)}, 0.5, {v(T1)}')
    a(f'v_mul_f32 {v(T0)}, {f32(1/64)}, {v(V_FI)}')
    a(f'v_cndmask_b32 {v(R.TC)}, {v(R.TC)}, {v(T1)}, vcc')
    sincos(a, R.TC, R.TS, 16)
    a(f'v_mul_f32 {v(T3)}, {v(V_FI)}, {v(V_FQ)}')
    a(f'v_mul_f32 {v(T3)}, {f32(1/16)}, {v(T3)}')
    for mt in range(2):
        for r in range(4):
            angle(a, TMP + 4*mt + r, T0, 16*mt + r, T3)
    sincos(a, TMP, TMP + 8, 8)
    a(f'v_and_b32 {v(T2)}, 1, {v(V_I)}')
    a('s_mov_b32 s28, 0x80008000')
    a(f'v_mul_lo_u32 {v(T2)}, {v(T2)}, s28')
    for mt in range(2):
        for nt in range(4):
            for r in range(4):
                c, sn = rot(TMP + 4*mt + r, TMP + 8 + 4*mt + r, nt*r)
                cvtpk(a, R.BB + 16*mt + 4*nt + r, c, neg(sn))
    for k in range(32):
        a(f'v_xor_b32 {v(R.BB+32+k)}, {v(R.BB+k)}, {v(T2)}')
    for k in range(8):
        a(f'v_accvgpr_read_b32 {v(R.Y+2*k+1)}, {ar(A_XR+k)}')
    for k in range(8):
        a(f'v_lshlrev_b32 {v(R.Y+2*k)}, 16, {v(R.Y+2*k+1)}')
        a(f'v_and_b32 {v(R.Y+2*k+1)}, 0xffff0000, {v(R.Y+2*k+1)}')
    return a


def p3_body(a):
    R = P3R
    Y, ST = R.Y, R.ST
    for h in range(2):
        a(f'ds_write_b128 {v(R.WA)}, {v(R.LD+4*h,4)} offset:{1024*h}')
    a('s_waitcnt lgkmcnt(0)')
    a('s_barrier')
    for k in range(8):
        a(f'ds_read_b128 {v(R.VD+4*k,4)}, {v(R.RA)} offset:{1024*k}')
    for mt in range(4):
        a(f's_waitcnt lgkmcnt({6 - 2*mt})')
        for t in range(2):
            mfma16(a, R.DR + 4*mt, R.VD + 8*mt + 4*t, R.BAR + 4*t, None if t == 0 else R.DR + 4*mt)
            mfma16(a, R.DI + 4*mt, R.VD + 8*mt + 4*t, R.BAI + 4*t, None if t == 0 else R.DI + 4*mt)
    for mt in range(4):
        cmul(a, R.RR + 4*mt, R.RI + 4*mt, R.DR + 4*mt, R.DI + 4*mt, R.TC + 4*mt, R.TS + 4*mt, 1)
        for r in range(4):
            cvtpk(a, R.FB + 4*mt + r, (R.RR + 4*mt + r, 0), (R.RI + 4*mt + r, 0))
        for nt in range(4):
            mfma16(a, Y + 4*nt, R.FB + 4*mt, R.BB + 16*mt + 4*nt, Y + 4*nt)
    a(f'v_pk_add_f32 {v(ST,2)}, {v(Y,2)}, {v(Y+2,2)}')
    a(f'v_pk_mul_f32 {v(ST+2,2)}, {v(Y,2)}, {v(Y,2)}')
    a(f'v_pk_fma_f32 {v(ST+2,2)}, {v(Y+2,2)}, {v(Y+2,2)}, {v(ST+2,2)}')
    for k in range(2, 8):
        a(f'v_pk_add_f32 {v(ST,2)}, {v(ST,2)}, {v(Y+2*k,2)}')
        a(f'v_pk_fma_f32 {v(ST+2,2)}, {v(Y+2*k,2)}, {v(Y+2*k,2)}, {v(ST+2,2)}')
    a(f'v_add_f32 {v(ST)}, {v(ST)}, {v(ST+1)}')
    a(f'v_add_f32 {v(ST+2)}, {v(ST+2)}, {v(ST+3)}')
    x1 = L()
    for k in range(8):
        cvtpk(x1, R.O1 + k, (Y + 2*k, 0), (Y + 2*k + 1, 0))
    for i, sh in enumerate((8, 4, 2, 1)):
        a(x1[2*i])
        a(f'v_add_f32_dpp {v(ST)}, {v(ST)}, {v(ST)} row_ror:{sh} row_mask:0xf bank_mask:0xf')
        a(f'v_add_f32_dpp {v(ST+2)}, {v(ST+2)}, {v(ST+2)} row_ror:{sh} row_mask:0xf bank_mask:0xf')
        a(x1[2*i+1])
    a(f'v_mov_b32 {v(ST+1)}, {v(ST)}')
    a(f'v_mov_b32 {v(ST+3)}, {v(ST+2)}')
    a(f'v_permlane16_swap_b32 {v(ST)}, {v(ST+1)}')
    a(f'v_permlane16_swap_b32 {v(ST+2)}, {v(ST+3)}')
    a(f'v_add_f32 {v(ST)}, {v(ST)}, {v(ST+1)}')
    a(f'v_add_f32 {v(ST+2)}, {v(ST+2)}, {v(ST+3)}')
    a(f'v_mul_f32 {v(ST)}, {f32(1/512)}, {v(ST)}')
    a(f'v_mul_f32 {v(ST+2)}, {f32(1/512)}, {v(ST+2)}')
    a(f'v_fma_f32 {v(ST+2)}, -{v(ST)}, {v(ST)}, {v(ST+2)}')
    a(f'v_max_f32 {v(ST+2)}, 0, {v(ST+2)}')
    a(f'v_add_f32 {v(ST+2)}, {f32(1e-5)}, {v(ST+2)}')
    a(f'v_rsq_f32 {v(ST+2)}, {v(ST+2)}')
    a(f'v_mul_f32 {v(ST+3)}, -{v(ST)}, {v(ST+2)}')
    for k in range(8):
        a(f'v_pk_fma_f32 {v(Y+2*k,2)}, {v(Y+2*k,2)}, {v(ST+2,2)}, {v(ST+2,2)} op_sel:[0,0,1] op_sel_hi:[1,0,1]')
    for k in range(8):
        cvtpk(a, R.O2 + k, (Y + 2*k, 0), (Y + 2*k + 1, 0))
    for k in range(2):
        for d in range(2):
            a(f'v_permlane16_swap_b32 {v(R.O2+4*k+d)}, {v(R.O2+4*k+2+d)}')
        tag(a, R.O2 + 4*k)
        a(f'ds_write_b128 {v(R.NW)}, {v(R.O2+4*k,4)} offset:{4096*k}')
    for k in range(2):
        for d in range(2):
            a(f'v_permlane16_swap_b32 {v(R.O1+4*k+d)}, {v(R.O1+4*k+2+d)}')
    a('s_waitcnt lgkmcnt(0)')
    a('s_barrier')
    for k in range(2):
        a(f'ds_read_b128 {v(R.FB+4*k,4)}, {v(R.NR)} offset:{4096*k}')
    for k in range(2):
        a(f's_waitcnt lgkmcnt({1-k})')
        a(f'buffer_store_dwordx4 {v(R.FB+4*k,4)}, {v(R.NO)}, {s(S_WS,4)}, s{35+k} offen sc1')
    for k in range(2):
        a(f'buffer_store_dwordx4 {v(R.O1+4*k,4)}, {v(V_ROWO)}, {s(S_WS,4)}, s37 offen offset:{512*k} sc1')


def frag_info(n):
    na = 32*PA
    if n < na:
        ks, blk = divmod(n, PA)
        return blk, ks
    n -= na
    blk, ks = divmod(n, 32)
    return PA + blk, ks


S_WG = 38


def dma_groups(first, count):
    assert count % 4 == 0
    per = count // 4
    groups = []
    for k in range(per):
        g = []
        if k == 0:
            g.append(f's_mul_i32 s40, {s(S_WAVE)}, {per*1024}')
        if k % 4 == 0:
            g.append(f's_add_u32 s39, s40, {(first + k)*1024}')
            g.append(f's_add_u32 s39, s39, {s(S_WG)}')
            g.append(f's_add_u32 m0, s40, {((first % RING) + k)*1024}')
        g.append(f'buffer_load_dwordx4 {v(V_LN16)}, {s(S_WS,4)}, s39 offen offset:{1024*(k & 3)} lds')
        groups.append(g)
    return groups


class VM:
    def __init__(self, a):
        self.a = a
        self.ops = []

    def op(self, text, tag, l0=False):
        self.a(text)
        self.ops.append((tag, l0))

    def wait(self, tag):
        idx = max(i for i, t in enumerate(self.ops) if t[0] == tag)
        n0 = min(len(self.ops) - 1 - idx, 63)
        n1 = min(sum(1 for t in self.ops[idx+1:] if not t[1]), 63)
        self.a(f's_waitcnt vmcnt({n0})')
        if n1 != n0:
            lab = label('w')
            self.a(f's_cmp_eq_u32 {s(S_LAYER)}, 0')
            self.a(f's_cbranch_scc1 {lab}')
            self.a(f's_waitcnt vmcnt({n1})')
            self.a(f'{lab}:')


ACT, ACC, WF = 16, 144, 224
V_FLO, V_FLD, V_HO, V_RD = T0, T1, T2, T3


def g2_out_addr(a, EO, tmp):
    a(f'v_bfe_u32 {v(tmp)}, v0, 3, 3')
    a(f'v_lshlrev_b32 {v(EO)}, 18, {v(tmp)}')
    a(f'v_and_b32 {v(tmp)}, 7, v0')
    a(f'v_lshl_add_u32 {v(EO)}, {v(tmp)}, 4, {v(EO)}')
    a(f's_bfe_u32 s57, {s(S_RHO)}, 0x10003')
    a('s_lshl_b32 s57, s57, 7')
    a(f's_lshr_b32 s58, {s(S_RHO)}, 4')
    a('s_add_u32 s57, s57, s58')
    a(f's_lshl_b32 s58, {s(S_WAVE)}, 5')
    a('s_add_u32 s57, s57, s58')
    a('s_lshl_b32 s57, s57, 10')
    a(f's_and_b32 s58, {s(S_RHO)}, 7')
    a('s_lshl_b32 s58, s58, 7')
    a('s_add_u32 s57, s57, s58')
    a('s_add_u32 s58, s57, 16384')


S_WDB = 23


def wd_group(j0):
    g = [f's_add_u32 s56, {s(S_WDB)}, {j0*1024}']
    for k in range(4):
        g.append(f'buffer_load_dwordx4 {ar(4*(j0+k),4)}, {v(V_LN16)}, {s(S_WS,4)}, s56 offen offset:{k*1024}')
    return g


def l0_only(ops):
    lab = label('l0')
    return [f's_cmp_eq_u32 {s(S_LAYER)}, 0\ns_cbranch_scc0 {lab}'] + list(ops) + [f'{lab}:']


def wait2(a, n0, n1):
    a(f's_waitcnt vmcnt({n0})')
    if n0 != n1:
        lab = label('w')
        a(f's_cmp_eq_u32 {s(S_LAYER)}, 0')
        a(f's_cbranch_scc1 {lab}')
        a(f's_waitcnt vmcnt({n1})')
        a(f'{lab}:')


def mfma32(a, d, x, y, c):
    a(f'v_mfma_f32_32x32x16_bf16 {v(d,16)}, {x}, {y}, ' + ('0' if c is None else v(c, 16)))


def ffn(a, wd_first):
    D = 5
    vm = VM(a)
    SETS = [144, 160, 176, 192, 208]
    accb = {0: SETS[0], 1: SETS[1], 2: SETS[2], 3: SETS[3], 4: SETS[4], 5: SETS[3], 6: SETS[2]}
    G2T = [WF, WF + 16, SETS[3], SETS[4]]
    V_CHK = T0
    HB = 28
    a(f's_lshr_b32 s43, {s(S_RHO)}, 4')
    a('s_lshl_b32 s43, s43, 2')
    a(f's_add_u32 s43, s43, {s(S_WAVE)}')
    a('s_lshl_b32 s44, s43, 15')
    a(f's_add_u32 s44, s44, {O_XN}')
    a('s_mul_i32 s45, s43, 114688')
    a(f's_and_b32 s46, {s(S_RHO)}, 15')
    a('s_mul_i32 s46, s46, 7168')
    a('s_add_u32 s45, s45, s46')
    a(f's_add_u32 s45, s45, {O_H}')
    a('s_add_u32 s46, s45, 4096')
    a(f's_lshr_b32 s48, {s(S_RHO)}, 3')
    a('s_mul_i32 s50, s48, 229376')
    a(f's_mul_i32 s51, {s(S_WAVE)}, 28672')
    a('s_add_u32 s50, s50, s51')
    a(f's_add_u32 s50, s50, {O_H}')
    a(f'v_mov_b32 {v(V_RD)}, {v(V_LN16)}')
    a(f'v_add_u32 {v(V_RD+1)}, 0x10000, {v(V_LN16)}')
    a(f'v_add_u32 {v(V_RD+2)}, 0x20000, {v(V_LN16)}')
    for k in range(8):
        a(f's_add_u32 s{HB+k}, s50, {(k >> 2)*114688 + (k & 3)*7168}')
    g2_out_addr(a, T2, T6)
    EO = T2
    a(f's_add_u32 s59, s57, {O_X1}')
    a('s_add_u32 s60, s59, 16384')
    a('s_waitcnt vmcnt(0)')
    stamp(a, 6)
    if STAMP:
        a('s_waitcnt lgkmcnt(0)')

    def act_ops(g):
        return [f's_add_u32 s54, s44, {4096*g}'] + \
               [f'buffer_load_dwordx4 {v(ACT+16*g+4*k,4)}, {v(V_LN16)}, {s(S_WS,4)}, s54 offen offset:{1024*k} sc1' for k in range(4)]
    actq = []
    for g in range(8):
        o = act_ops(g)
        actq.append((g, [o[0].replace('s54', 's53')], o[1].replace('s54', 's53')))
        for x in o[2:]:
            actq.append((g, [], x.replace('s54', 's53')))

    def issue_act(k):
        for _ in range(k):
            if actq:
                g, pre, op = actq.pop(0)
                emit(a, pre)
                vm.op(op, f'act{g}')
    issue_act(ACT0)
    a('s_barrier')

    def dsread(n):
        off = (n % RING)*1024
        a(f'ds_read_b128 {v(WF+4*(n % 8),4)}, {v(V_RD + (off >> 16))} offset:{off & 0xffff}')

    def act_check(g):
        assert sum(1 for o in vm.ops if o[0] == f'act{g}') == 4, g
        vm.wait(f'act{g}')
        poll_check(a, act_ops(g), [ACT + 16*g + 4*k for k in range(4)], V_CHK)

    def epilogue(blk):
        b = accb[blk]
        ops = []
        for e in range(8):
            ops.append(f'v_max_f32 {v(b+e)}, 0, {v(b+e)}')
        for e in range(8):
            ops.append(f'v_mul_f32 {v(b+e)}, {v(b+e)}, {v(b+8+e)}')
        for e in range(4):
            ops.append(f'v_cvt_pk_bf16_f32 {v(b+8+e)}, {v(b+2*e)}, {v(b+2*e+1)}')
        ops.append(f'v_bfi_b32 {v(b+8)}, 1, {s(S_LAYER)}, {v(b+8)}')
        ops.append(('vm', f'buffer_store_dwordx4 {v(b+8,4)}, {v(V_LN16)}, {s(S_WS,4)}, s{45 + (blk >> 2)} offen offset:{1024*(blk & 3)} sc1', f'h{blk}'))
        return ops

    def hslot(j):
        j %= 40
        return SETS[0] + 4*j if j < 8 else ACT + 4*(j - 8)

    def h_load(j):
        b, kk = j & 1, j >> 1
        nb, ftl = kk >> 2, kk & 3
        if nb == 4:
            a(f's_add_u32 s{HB+4*b+ftl}, s{HB+4*b+ftl}, 4096')
        vm.op(f'buffer_load_dwordx4 {v(hslot(j),4)}, {v(V_LN16)}, {s(S_WS,4)}, s{HB+4*b+ftl} offen offset:{(nb & 3)*1024} sc1', f'hg{j >> 2}')

    def h_check(g):
        assert sum(1 for o in vm.ops if o[0] == f'hg{g}') == 4, g
        vm.wait(f'hg{g}')
        rl = []
        for j in range(4*g, 4*g + 4):
            b, kk = j & 1, j >> 1
            nb, ftl = kk >> 2, kk & 3
            rl.append(f's_add_u32 s55, s50, {b*114688 + ftl*7168 + nb*1024}')
            rl.append(f'buffer_load_dwordx4 {v(hslot(j),4)}, {v(V_LN16)}, {s(S_WS,4)}, s55 offen sc1')
        poll_check(a, rl, [hslot(j) for j in range(4*g, 4*g + 4)], V_CHK)

    wdn = [wd_first]

    def wd_pair():
        j = wdn[0]
        lab = label('l0')
        a(f's_cmp_eq_u32 {s(S_LAYER)}, 0')
        a(f's_cbranch_scc0 {lab}')
        if j % 4 == 0:
            a(f's_add_u32 s56, {s(S_WDB)}, {j*1024}')
        for k in range(2):
            vm.op(f'buffer_load_dwordx4 {ar(4*(j+k),4)}, {v(V_LN16)}, {s(S_WS,4)}, s56 offen offset:{((j+k) & 3)*1024}', 'wd', True)
        a(f'{lab}:')
        wdn[0] += 2

    def pend_op(o):
        if isinstance(o, tuple):
            vm.op(o[1], o[2])
        else:
            a(o)

    N = 224
    for n in range(D):
        dsread(n)
    act_check(0)
    stamp(a, 7)
    if STAMP:
        a('s_waitcnt lgkmcnt(0)')
    gstamp(a, 'g1 start')
    started = set()
    pend = []
    dmaq = []
    hn = 0
    checked = 0
    NA = 32*PA
    last_of = {}
    for n in range(N):
        last_of[frag_info(n)[0]] = n
    cool = 0
    for n in range(N):
        blk, ks = frag_info(n)
        if n < NA and n % (4*PA) == 2*PA and checked + 1 < 8:
            checked += 1
            act_check(checked)
        if n in (40 + D, 80 + D):
            a('s_barrier')
            dmaq += dma_groups(RING + (n - D - 40), 40)
        if n in (48, NA, 128, 160, 192):
            gstamp(a, f'n={n}')
        if n + D == RING:
            vm.wait('dma')
            a('s_barrier')
        if n + D < N:
            dsread(n + D)
        a(f's_waitcnt lgkmcnt({min(D, N - 1 - n)})')
        mfma32(a, accb[blk], v(WF + 4*(n % 8), 4), v(ACT + 4*ks, 4), None if blk not in started else accb[blk])
        started.add(blk)
        for _ in range(3):
            if pend:
                pend_op(pend.pop(0))
        for bb, ln in last_of.items():
            if n == max(ln, NA - 1) + 3 and bb < 6:
                pend += epilogue(bb)
        cool -= 1
        if cool <= 0:
            cool = 2
            if actq:
                issue_act(1)
            elif dmaq:
                g = dmaq.pop(0)
                emit(a, g[:-1])
                vm.op(g[-1], 'dma')
            elif (n >= 192 - 18 and hn < 8) or (blk == 6 and hn - 8 < ks - 1):
                h_load(hn)
                hn += 1
            elif wdn[0] < 56:
                wd_pair()
                cool = 4
            else:
                cool = 0
        if n == N - 6:
            h_check(0)
    assert wdn[0] >= 56 and not dmaq and not pend, (wdn, len(dmaq), len(pend))
    stamp(a, 8)
    gstamp(a, 'g1 end')
    vm.wait('wd')
    XR = SETS[2]
    LWS = [SETS[2] + 12 + g for g in range(4)]
    LR = T3
    order = [(kk, t) for kk in range(24) for t in (2, 3, 0, 1)] + [(kk, t) for t in range(4) for kk in range(24, 28)]
    hchecked = 0
    for m, (kk, t) in enumerate(order):
        b, a_ = t >> 1, t & 1
        if m in (0, 32, 72):
            gstamp(a, f'm={m}')
        if m == 3:
            pend += epilogue(6)
        if m == 24:
            a('s_barrier')
            for rd in range(2):
                vm.op(f'buffer_load_dwordx4 {v(XR+4*rd,4)}, {v(EO)}, {s(S_WS,4)}, s{59+rd} offen sc1', 'xr')
            sd = L()
            LW = LWS[0]
            sd(f'v_bfe_u32 {v(LW)}, v0, 3, 3')
            sd(f'v_and_b32 {v(LR)}, 7, v0')
            sd(f'v_lshlrev_b32 {v(LR)}, 1, {v(LR)}')
            sd(f'v_xor_b32 {v(LR)}, {v(LR)}, {v(LW)}')
            sd(f'v_lshlrev_b32 {v(LR)}, 4, {v(LR)}')
            sd(f'v_lshl_add_u32 {v(LR)}, {v(LW)}, 8, {v(LR)}')
            sd(f'v_lshl_add_u32 {v(LR)}, {v(V_W)}, 12, {v(LR)}')
            sd(f'v_xor_b32 {v(LR+1)}, 16, {v(LR)}')
            sd(f'v_bfe_u32 {v(LW)}, v0, 5, 1')
            sd(f'v_and_b32 {v(LR+2)}, 7, v0')
            sd(f'v_xor_b32 {v(LW)}, {v(LW)}, {v(LR+2)}')
            sd(f'v_lshlrev_b32 {v(LW)}, 4, {v(LW)}')
            sd(f'v_and_b32 {v(LR+2)}, 31, v0')
            sd(f'v_lshl_add_u32 {v(LW)}, {v(LR+2)}, 8, {v(LW)}')
            sd(f'v_lshl_add_u32 {v(LW)}, {v(V_W)}, 14, {v(LW)}')
            for g in range(1, 4):
                sd(f'v_xor_b32 {v(LWS[g])}, {32*g}, {v(LW)}')
            pend += sd
        mfma32(a, G2T[t], ar(8*kk + 4*a_, 4), v(hslot(2*kk + b), 4), None if kk == 0 else G2T[t])
        for _ in range(3):
            if pend:
                pend_op(pend.pop(0))
        if m % 2 == 1 and hn < 56 and (hn < 40 or (hn - 40)//2 < m//4 - 0) and (hn < 48 or m >= HL6):
            h_load(hn)
            hn += 1
        if m % 8 == 3 and hchecked < 13 and m < 96:
            hchecked += 1
            h_check(hchecked)
        if m == 93:
            hchecked += 1
            h_check(hchecked)
        if m == 88:
            vm.wait('xr')
            X = SETS[0]
            for k in range(8):
                pend.append(f'v_lshlrev_b32 {v(X+2*k)}, 16, {v(XR+k)}')
                pend.append(f'v_and_b32 {v(X+2*k+1)}, 0xffff0000, {v(XR+k)}')
        if m >= 102 and (m - 102) % 4 in (0, 1):
            tw = (m - 102) // 4
            for g in (0, 1) if (m - 102) % 4 == 0 else (2, 3):
                a(f'ds_write_b128 {v(LWS[g])}, {v(G2T[tw]+4*g,4)} offset:{8192*(tw >> 1) + 128*(tw & 1)}')
    assert hn == 56 and hchecked == 13 and not pend, (hn, hchecked, len(pend))
    stamp(a, 9)
    gstamp(a, 'g2 end')
    for g in range(4):
        a(f'ds_write_b128 {v(LWS[g])}, {v(G2T[3]+4*g,4)} offset:{8192 + 128}')
    a('s_waitcnt lgkmcnt(0)')
    a('s_barrier')
    S = ACT
    for rd in range(2):
        for w in range(4):
            for z in range(2):
                a(f'ds_read_b128 {v(S+32*rd+8*w+4*z,4)}, {v(LR+z)} offset:{16384*w + 2048*rd}')
    for rd in range(2):
        for w in range(4):
            a(f's_waitcnt lgkmcnt({14 - 8*rd - 2*w})')
            for k in range(4):
                a(f'v_pk_add_f32 {v(X+8*rd+2*k,2)}, {v(X+8*rd+2*k,2)}, {v(S+32*rd+8*w+2*k,2)}')
        for k in range(4):
            cvtpk(a, WF + 4*rd + k, (X + 8*rd + 2*k, 0), (X + 8*rd + 2*k + 1, 0))
        a(f'buffer_store_dwordx4 {v(WF+4*rd,4)}, {v(EO)}, {s(S_DST,4)}, s{57+rd} offen sc1')
    stamp(a, 10)


def k2(a):
    stamp(a, 0)
    a(f's_load_dwordx2 s[6:7], s[0:1], {KA_WS}')
    a(f's_load_dwordx2 s[4:5], s[0:1], {KA_X}')
    common_setup(a)
    emit(a, p2_addr())
    a(f's_and_b32 {s(S_WG)}, {s(S_RHO)}, 15')
    a(f's_mul_i32 {s(S_WG)}, {s(S_WG)}, 229376')
    a(f's_add_u32 {s(S_WG)}, {s(S_WG)}, {WS_WGU}')
    a(f's_and_b32 {s(S_WDB)}, {s(S_RHO)}, 7')
    a(f's_mul_i32 {s(S_WDB)}, {s(S_WDB)}, 229376')
    a(f's_mul_i32 s28, {s(S_WAVE)}, 57344')
    a(f's_add_u32 {s(S_WDB)}, {s(S_WDB)}, s28')
    a(f's_add_u32 {s(S_WDB)}, {s(S_WDB)}, {WS_WD}')
    a(f'v_lshrrev_b32 {v(T0)}, 5, v0')
    a(f'v_lshlrev_b32 {v(T0)}, 18, {v(T0)}')
    a(f'v_lshl_add_u32 {v(T0)}, {v(V_I)}, 4, {v(T0)}')
    a(f'v_and_b32 {v(T1)}, 1, {v(V_Q)}')
    a(f'v_lshl_add_u32 {v(T0)}, {v(T1)}, 3, {v(T0)}')
    a(f'v_lshlrev_b32 {v(T1)}, 5, v0')
    a(f's_lshl_b32 s28, {s(S_S2)}, 10')
    a(f's_lshl_b32 s29, {s(S_RHO)}, 13')
    a(f's_add_u32 s29, s29, {WS_WP}')
    a('s_waitcnt lgkmcnt(0)')
    srd(a, S_WS, 6, 0, WS_TOTAL)
    emit(a, p2_loads())
    for z in range(2):
        a(f'buffer_load_dwordx4 {ar(A_WP+4*z,4)}, {v(T1)}, {s(S_WS,4)}, s29 offen offset:{16*z}')
    srd(a, S_X, 4, 0, SZ_2M)
    srd(a, S_DST, 6, WS_X2, SZ_2M)
    for nt in range(4):
        a(f'buffer_load_dwordx2 {ar(A_XR+2*nt,2)}, {v(T0)}, {s(S_X,4)}, s28 offen offset:{256*nt}')
    c2 = p2_consts()
    side = dma_groups(0, W0A)
    emit(a, merge(c2, side))
    a(f's_waitcnt vmcnt({len(side)})')
    a(f's_branch L_p2_data')

    a('L_layer:')
    emit(a, p2_addr())
    c2 = p2_consts()
    cut = len(c2) * CUT2 // 100
    emit(a, c2[:cut])
    emit(a, p2_loads())
    side = dma_groups(40, 40)
    emit(a, merge(c2[cut:], side))
    a(f's_waitcnt vmcnt({len(side)})')
    a('L_p2_data:')
    stamp(a, 1)
    poll_check(a, p2_loads(), [P2R.LD, P2R.LD + 4], T0)
    stamp(a, 2)
    p2_body(a)
    stamp(a, 3)
    emit(a, p3_addr())
    c3 = p3_consts()
    cut = len(c3) * CUT3 // 100
    emit(a, c3[:cut])
    emit(a, p3_loads())
    dg = dma_groups(W0A, RING - W0A)
    side = [l0_only(sum(dg[k:k+4], [])) for k in range(0, len(dg), 4)]
    side += [l0_only(wd_group(j)) for j in range(0, WD_P3, 4)]
    emit(a, merge(c3[cut:], side))
    wait2(a, len(dg) + WD_P3, 0)
    poll_check(a, p3_loads(), [P3R.LD, P3R.LD + 4], T0)
    stamp(a, 4)
    p3_body(a)
    stamp(a, 5)
    ffn(a, WD_P3)
    a(f's_cmp_eq_u32 {s(S_LAYER)}, 1')
    a('s_cbranch_scc1 L_finish')
    R = P1R
    a(f's_load_dwordx2 s[4:5], s[0:1], {KA_OUT}')
    c1 = p1_consts(LDS_A, LDS_B)
    cut = len(c1) * CUT1 // 100
    emit(a, c1[:cut])
    a(f's_lshl_b32 s30, {s(S_S2)}, 10')
    a(f's_add_u32 s30, s30, {WS_X2}')
    ld = [f'buffer_load_dwordx4 {v(R.LD+4*k,4)}, {v(V_ROWO)}, {s(S_WS,4)}, s30 offen offset:{512*k} sc1' for k in range(2)]
    emit(a, ld)
    a('s_barrier')
    side = dma_groups(0, 40)
    emit(a, merge(c1[cut:], side))
    a(f's_mov_b32 {s(S_LAYER)}, 1')
    a(f's_lshl_b32 s31, {s(S_RHO)}, 13')
    a(f's_lshl_b32 s32, {s(S_WAVE)}, 11')
    a('s_add_u32 s31, s31, s32')
    a(f's_waitcnt vmcnt({len(side)}) lgkmcnt(0)')
    srd(a, S_DST, 4, 0, SZ_2M)
    poll_check(a, ld, [R.LD, R.LD + 4], T0, sentinel=True)
    stamp(a, 11)
    p1_body(a, 31, 'sc1', True)
    stamp(a, 12)
    if STAMP:
        a('s_mov_b32 s98, 1')
        dump_stamps(a, 98)
    a('s_branch L_layer')
    a('L_finish:')
    if STAMP:
        a('s_waitcnt vmcnt(0)')
        stamp(a, 11)
        a('s_mov_b32 s98, 2')
        dump_stamps(a, 98)
    a('s_endpgm')


def k1_p1(a):
    R = P1R
    stamp(a, 0)
    a(f's_load_dwordx2 s[6:7], s[0:1], {KA_WS}')
    a(f's_load_dwordx2 s[4:5], s[0:1], {KA_X}')
    common_setup(a)
    a(f's_lshl_b32 s30, {s(S_S2)}, 10')
    a('s_waitcnt lgkmcnt(0)')
    srd(a, S_X, 4, 0, SZ_2M)
    for k in range(2):
        a(f'buffer_load_dwordx4 {v(R.LD+4*k,4)}, {v(V_ROWO)}, {s(S_X,4)}, s30 offen offset:{512*k}')
    srd(a, S_WS, 6, 0, WS_TOTAL)
    emit(a, p1_consts(0, 8192))
    a(f's_lshl_b32 s31, {s(S_RHO)}, 13')
    a(f's_lshl_b32 s32, {s(S_WAVE)}, 11')
    a('s_add_u32 s31, s31, s32')
    stamp(a, 1)
    a('s_waitcnt vmcnt(0)')
    stamp(a, 2)
    p1_body(a, 31, K1F, False)
    stamp(a, 3)
    if STAMP:
        a('s_waitcnt vmcnt(0)')
        stamp(a, 4)
        a('s_mov_b32 s98, 0')
        dump_stamps(a, 98)
    a('s_endpgm')


def k1_prep(a):
    COL, CONJ, DO = 1, 4, 5
    P0, P1_ = 2, 3
    LN16, RA = 6, 7
    AD, RE, IM = 8, 16, 24
    WA = 32
    FR = 40
    stamp(a, 0)
    a('s_sub_u32 s40, s2, 256')
    a(f's_load_dwordx4 s[8:11], s[0:1], {KA_WR}')
    a(f's_load_dwordx2 s[6:7], s[0:1], {KA_WS}')
    a(f's_load_dwordx4 s[44:47], s[0:1], {KA_WG}')
    a(f's_load_dwordx2 s[48:49], s[0:1], {KA_WD}')
    a(f'v_and_b32 {v(P0)}, 63, v0')
    a(f'v_lshrrev_b32 {v(P1_)}, 6, v0')
    a(f'v_lshlrev_b32 {v(LN16)}, 4, {v(P0)}')
    a(f'v_readfirstlane_b32 s41, {v(P1_)}')
    a('s_and_b32 s42, s40, 7')
    a('s_lshl_b32 s42, s42, 5')
    a('s_lshr_b32 s43, s40, 3')
    a('s_add_u32 s42, s42, s43')
    lwd, lclr, ljoin = label('wd'), label('clr'), label('join')
    a('s_cmp_eq_u32 s41, 3')
    a(f's_cbranch_scc1 {lclr}')
    a('s_cmp_eq_u32 s41, 2')
    a(f's_cbranch_scc1 {lwd}')
    for k in range(7):
        a(f'v_add_u32 {v(RE)}, {64*k}, {v(P0)}')
        a(f'v_mul_u32_u24 {v(RE+1)}, 4682, {v(RE)}')
        a(f'v_lshrrev_b32 {v(RE+1)}, 16, {v(RE+1)}')
        a(f'v_mul_u32_u24 {v(WA+k)}, {3584 - 224}, {v(RE+1)}')
        a(f'v_lshl_add_u32 {v(WA+k)}, {v(RE)}, 4, {v(WA+k)}')
    a('s_lshr_b32 s50, s42, 4')
    a('s_and_b32 s51, s42, 15')
    a(f's_mul_i32 s52, s50, {32*3584}')
    a('s_mul_i32 s53, s51, 224')
    a('s_add_u32 s52, s52, s53')
    a('s_mul_i32 s54, s41, 7168')
    a('s_waitcnt lgkmcnt(0)')
    a('s_cmp_eq_u32 s41, 1')
    a('s_cselect_b32 s32, s46, s44')
    a('s_cselect_b32 s33, s47, s45')
    a(f's_mov_b32 s34, {512*3584}')
    a('s_mov_b32 s35, 0x20000')
    for k in range(7):
        a(f's_add_u32 m0, s54, {1024*k}')
        a(f'buffer_load_dwordx4 {v(WA+k)}, s[32:35], s52 offen lds')
    a(f'v_bfe_u32 {v(RE)}, v0, 4, 1')
    a(f'v_mul_u32_u24 {v(RA)}, 7168, {v(RE)}')
    a(f'v_bfe_u32 {v(RE)}, v0, 5, 2')
    a(f'v_lshlrev_b32 {v(RE)}, 3, {v(RE)}')
    a(f'v_bfe_u32 {v(RE+1)}, v0, 2, 2')
    a(f'v_add_u32 {v(RE)}, {v(RE)}, {v(RE+1)}')
    a(f'v_mul_u32_u24 {v(RE)}, 224, {v(RE)}')
    a(f'v_add_u32 {v(RA)}, {v(RA)}, {v(RE)}')
    a(f'v_and_b32 {v(RE)}, 1, v0')
    a(f'v_lshl_add_u32 {v(RA)}, {v(RE)}, 4, {v(RA)}')
    a(f'v_bfe_u32 {v(RE)}, v0, 1, 1')
    a(f'v_lshl_add_u32 {v(RA)}, {v(RE)}, 3, {v(RA)}')
    a('s_lshl_b32 s50, s50, 1')
    a('s_add_u32 s50, s50, s41')
    a('s_mul_i32 s53, s51, 229376')
    a(f's_add_u32 s53, s53, {WS_WGU}')
    a(f's_mul_i32 s63, s50, {PA*1024}')
    a('s_lshl_b32 s62, s50, 10')
    for blk in range(7):
        if blk < PA:
            a(f's_add_u32 s{54+blk}, s63, {1024*blk}')
        else:
            a(f's_add_u32 s{54+blk}, s62, {32768*blk}')
        a(f's_add_u32 s{54+blk}, s{54+blk}, s53')
    a(f's_branch {ljoin}')
    a(f'{lwd}:')
    a(f'v_bfe_u32 {v(RE)}, v0, 5, 1')
    a(f'v_lshlrev_b32 {v(WA)}, 10, {v(RE)}')
    a(f'v_and_b32 {v(RE)}, 31, v0')
    a(f'v_lshl_add_u32 {v(WA)}, {v(RE)}, 4, {v(WA)}')
    a('s_lshr_b32 s50, s42, 1')
    a('s_and_b32 s51, s42, 1')
    a('s_lshl_b32 s52, s50, 14')
    a('s_lshl_b32 s53, s51, 9')
    a('s_add_u32 s52, s52, s53')
    a('s_waitcnt lgkmcnt(0)')
    srd(a, 32, 48, 0, 1792*1024)
    for k in range(8):
        a(f's_add_u32 s53, s52, {2048*k}')
        a(f's_mov_b32 m0, {16384 + 1024*k}')
        a(f'buffer_load_dwordx4 {v(WA)}, s[32:35], s53 offen lds')
    a(f'v_bfe_u32 {v(RE)}, v0, 5, 1')
    a(f'v_lshlrev_b32 {v(RE)}, 3, {v(RE)}')
    a(f'v_bfe_u32 {v(RE+1)}, v0, 2, 2')
    a(f'v_add_u32 {v(RE)}, {v(RE)}, {v(RE+1)}')
    a(f'v_lshlrev_b32 {v(RA)}, 9, {v(RE)}')
    a(f'v_bfe_u32 {v(RE)}, v0, 4, 1')
    a(f'v_lshl_add_u32 {v(RA)}, {v(RE)}, 5, {v(RA)}')
    a(f'v_and_b32 {v(RE)}, 3, v0')
    a(f'v_lshl_add_u32 {v(RA)}, {v(RE)}, 3, {v(RA)}')
    a(f'v_add_u32 {v(RA)}, 16384, {v(RA)}')
    a('s_mul_i32 s52, s50, 9363')
    a('s_lshr_b32 s52, s52, 16')
    a('s_mul_i32 s53, s52, 7')
    a('s_sub_u32 s53, s50, s53')
    a('s_lshr_b32 s62, s52, 2')
    a('s_mul_i32 s62, s62, 57344')
    a('s_and_b32 s52, s52, 3')
    a('s_lshl_b32 s53, s53, 2')
    a('s_add_u32 s52, s52, s53')
    a('s_lshl_b32 s52, s52, 11')
    a('s_add_u32 s62, s62, s52')
    a(f's_mul_i32 s51, s51, {4*229376}')
    a('s_add_u32 s62, s62, s51')
    for ct in range(8):
        a(f's_add_u32 s{54+ct}, s62, {WS_WD + (ct >> 1)*229376 + (ct & 1)*1024}')
    a(f's_branch {ljoin}')
    a(f'{lclr}:')
    for k in range(4):
        a(f'v_mov_b32 {v(FR+k)}, -1')
    per = CLR_SIZE // 256 // 1024
    a(f's_mul_i32 s50, s42, {per*1024}')
    a('s_waitcnt lgkmcnt(0)')
    srd(a, 32, 6, CLR_BASE, CLR_SIZE)
    a(f'{ljoin}:')
    a(f'v_cmp_eq_u32 vcc, 0, {v(P0)}')
    a(f'v_lshlrev_b32 {v(COL)}, 6, {v(P1_)}')
    a(f'v_sub_u32 {v(CONJ)}, 256, {v(COL)}')
    a(f'v_cndmask_b32 {v(COL)}, v0, {v(CONJ)}, vcc')
    a(f'v_lshlrev_b32 {v(COL)}, 1, {v(COL)}')
    a(f'v_cmp_ne_u32 s[12:13], 0, {v(P1_)}')
    a('s_and_b64 vcc, vcc, s[12:13]')
    a(f'v_mov_b32 {v(CONJ)}, 0x80000000')
    a(f'v_cndmask_b32 {v(CONJ)}, 0, {v(CONJ)}, vcc')
    a('s_lshr_b32 s14, s42, 6')
    a('s_lshl_b32 s14, s14, 1')
    a('s_and_b32 s15, s42, 15')
    a('s_lshl_b32 s15, s15, 3')
    a('s_add_u32 s14, s14, s15')
    a('s_bfe_u32 s15, s42, 0x20004')
    a('s_lshl_b32 s15, s15, 9')
    a('s_add_u32 s14, s14, s15')
    srd(a, 20, 8, 0, 2048*514)
    srd(a, 24, 10, 0, 2048*514)
    srd(a, 28, 6, 0, WS_TOTAL)
    for z in range(2):
        for r in range(4):
            k = 4*z + r
            a(f's_add_u32 s15, s14, {z + 128*r}')
            a('s_sub_u32 s16, 2048, s15')
            a('s_and_b32 s16, s16, 2047')
            a('s_mul_i32 s15, s15, 514')
            a('s_mul_i32 s16, s16, 514')
            a(f'v_mov_b32 {v(AD+k)}, s15')
            a(f'v_mov_b32 {v(DO)}, s16')
            a(f'v_cndmask_b32 {v(AD+k)}, {v(AD+k)}, {v(DO)}, vcc')
            a(f'v_add_u32 {v(AD+k)}, {v(AD+k)}, {v(COL)}')
            a(f'buffer_load_ushort {v(RE+k)}, {v(AD+k)}, s[20:23], 0 offen')
            a(f'buffer_load_ushort {v(IM+k)}, {v(AD+k)}, s[24:27], 0 offen')
    a(f'v_lshrrev_b32 {v(DO)}, 4, {v(P0)}')
    a(f'v_lshlrev_b32 {v(DO)}, 6, {v(DO)}')
    a(f'v_lshl_add_u32 {v(DO)}, {v(P1_)}, 4, {v(DO)}')
    a(f'v_and_b32 {v(P0)}, 15, {v(P0)}')
    a(f'v_add_u32 {v(DO)}, {v(DO)}, {v(P0)}')
    a(f'v_lshlrev_b32 {v(DO)}, 13, {v(DO)}')
    a('s_lshl_b32 s17, s42, 5')
    a(f's_add_u32 s17, s17, {WS_WP}')
    l3, l2, lf = label('c3'), label('c2'), label('fin')
    a('s_cmp_eq_u32 s41, 3')
    a(f's_cbranch_scc1 {l3}')
    a('s_waitcnt vmcnt(16)')
    a('s_barrier')
    a('s_cmp_eq_u32 s41, 2')
    a(f's_cbranch_scc1 {l2}')
    for blk in range(7):
        for h in range(2):
            a(f'ds_read_b64_tr_b16 {v(FR+4*blk+2*h,2)}, {v(RA)} offset:{32*blk + 4*224*h}')
    for blk in range(7):
        a(f's_waitcnt lgkmcnt({12 - 2*blk})')
        a(f'buffer_store_dwordx4 {v(FR+4*blk,4)}, {v(LN16)}, s[28:31], s{54+blk} offen {K1F}')
    a('s_waitcnt vmcnt(7)')
    a(f's_branch {lf}')
    a(f'{l2}:')
    a('s_cmp_ge_u32 s42, 224')
    lsk = label('sk')
    a(f's_cbranch_scc1 {lsk}')
    for ct in range(8):
        for h in range(2):
            a(f'ds_read_b64_tr_b16 {v(FR+4*ct+2*h,2)}, {v(RA)} offset:{64*ct + 2048*h}')
    for ct in range(8):
        a(f's_waitcnt lgkmcnt({14 - 2*ct})')
        a(f'buffer_store_dwordx4 {v(FR+4*ct,4)}, {v(LN16)}, s[28:31], s{54+ct} offen {K1F}')
    a('s_waitcnt vmcnt(8)')
    a(f's_branch {lf}')
    a(f'{lsk}:')
    a('s_waitcnt vmcnt(0)')
    a(f's_branch {lf}')
    a(f'{l3}:')
    for k in range(per):
        if k == CLRB:
            a('s_barrier')
        if k and k % 4 == 0:
            a('s_add_u32 s50, s50, 4096')
        a(f'buffer_store_dwordx4 {v(FR,4)}, {v(LN16)}, s[32:35], s50 offen offset:{1024*(k & 3)} {CLRF}')
    a(f's_waitcnt vmcnt({per})')
    a(f'{lf}:')
    for k in range(8):
        a(f'v_lshl_or_b32 {v(RE+k)}, {v(IM+k)}, 16, {v(RE+k)}')
        a(f'v_xor_b32 {v(RE+k)}, {v(RE+k)}, {v(CONJ)}')
    a(f'buffer_store_dwordx4 {v(RE,4)}, {v(DO)}, s[28:31], s17 offen')
    a(f'buffer_store_dwordx4 {v(RE+4,4)}, {v(DO)}, s[28:31], s17 offen offset:16')
    if STAMP:
        a('s_waitcnt vmcnt(0)')
        stamp(a, 1)
        a(f's_mov_b32 {s(S_SPIN)}, 0')
        a('s_mov_b32 s98, 0')
        dump_stamps(a, 98)
    a('s_endpgm')


def kernel_head(a, name):
    a.raw(f'.globl {name}\n.p2align 8\n.type {name},@function')
    a(f'{name}:')


def descriptor(name, vg, ag=0, sg=100):
    acc = (vg + 3) // 4 * 4
    return f""".amdhsa_kernel {name}
  .amdhsa_next_free_vgpr {acc + ag if ag else vg}
  .amdhsa_next_free_sgpr {sg}
  .amdhsa_accum_offset {acc}
  .amdhsa_group_segment_fixed_size 0
  .amdhsa_kernarg_size 80
  .amdhsa_user_sgpr_count 2
  .amdhsa_user_sgpr_kernarg_segment_ptr 1
  .amdhsa_system_sgpr_workgroup_id_x 1
.end_amdhsa_kernel
"""


def build():
    a = Asm()
    kernel_head(a, 'k1_kernel')
    a('s_cmp_ge_u32 s2, 256')
    a('s_cbranch_scc1 L_k1_prep')
    k1_p1(a)
    a('L_k1_prep:')
    a('s_cmp_ge_u32 s2, 512')
    a('s_cbranch_scc1 L_k1_exit')
    k1_prep(a)
    a('L_k1_exit:')
    a('s_endpgm')
    kernel_head(a, 'k2_kernel')
    a('s_cmp_ge_u32 s2, 256')
    a('s_cbranch_scc1 L_k2_exit')
    k2(a)
    a('L_k2_exit:')
    a('s_endpgm')
    descs = [descriptor('k1_kernel', P1R.NV), descriptor('k2_kernel', 256, 256)]
    launches = [('k1_kernel', 512, 24576), ('k2_kernel', 256, LDS_TOTAL)]
    head = ''.join(f'; @launch kernel={k} grid=({g},1,1) block=(256,1,1) lds={l}\n' for k, g, l in launches)
    txt = head + '.amdgcn_target "amdgcn-amd-amdhsa--gfx950"\n.text\n' + a.finalize()
    txt += '.section .rodata,"a"\n' + ''.join('.p2align 6\n' + d for d in descs)
    return txt


if __name__ == '__main__':
    out = sys.argv[1]
    STAMP = 'stamp' in sys.argv[2:]
    EXP = set(sys.argv[2:])
    for x in sys.argv[2:]:
        if '=' in x:
            k_, v_ = x.split('=')
            globals()[k_] = int(v_) if v_.lstrip('-').isdigit() else v_.replace('+', ' ')
    open(out, 'w').write(build())
    print('wrote', out)
```

```python
import struct, sys
from asmlib import Asm

NAME = 'interleave_layers__spectral_gfnet__glu_gated_reglu__prompt'

O_U, O_X1, O_V, O_XN, WS_X2, O_H = 0x0, 0x200000, 0x400000, 0x600000, 0x800000, 0xA00000
CLR_BASE, CLR_SIZE = 0x400000, 0xD00000
WS_WP, WS_WGU, WS_WD, WS_TOTAL = 0x1200000, 0x1400000, 0x1800000, 0x1A00000
WS_STAMP = 0x4000000
SZ_2M = 0x200000
KA_X, KA_WR, KA_WI, KA_WG, KA_WU, KA_WD, KA_OUT, KA_DBG, KA_WS = 0, 8, 16, 32, 40, 48, 56, 64, 72
RING = 144
LDS_A, LDS_B = RING * 1024, RING * 1024 + 8192
LDS_TOTAL = RING * 1024 + 16384
HL6 = 40
ACT0 = 12
W0A = 80
WD_P3 = 12
CUT1, CUT2, CUT3 = 50, 45, 40
K1F = 'sc1'
CLRB = 51
CLRF = 'sc1'
PA = 3
SPIN_LIMIT = 100000
STAMP = False
EXP = set()

S_WS, S_X, S_DST = 8, 12, 16
S_RHO, S_WAVE, S_LAYER, S_SPIN, S_S2 = 20, 21, 22, 24, 25
V_I, V_Q, V_W, V_FI, V_FQ, V_LN16, V_T16, V_ROWO = 1, 2, 3, 4, 5, 6, 7, 8
T0, T1, T2, T3, T4, T5, T6 = 9, 10, 11, 12, 13, 14, 15
A_WP, A_XR = 224, 232


def v(i, n=1):
    return f'v{i}' if n == 1 else f'v[{i}:{i+n-1}]'


def s(i, n=1):
    return f's{i}' if n == 1 else f's[{i}:{i+n-1}]'


def ar(i, n=1):
    return f'a{i}' if n == 1 else f'a[{i}:{i+n-1}]'


def f32(x):
    return '0x%08x' % struct.unpack('<I', struct.pack('<f', x))[0]


class L(list):
    def __call__(self, t):
        self.append(t)


def emit(a, lst):
    for t in lst:
        a(t)


def merge(main, side):
    out = L()
    n, m = len(main), len(side)
    j = 0
    for i, t in enumerate(main):
        while j < m and j * n <= i * m:
            out.extend(side[j])
            j += 1
        out(t)
    while j < m:
        out.extend(side[j])
        j += 1
    return out


def srd(a, dst, base, off, size):
    if off:
        a(f's_add_u32 {s(dst)}, {s(base)}, 0x{off:x}')
        a(f's_addc_u32 {s(dst+1)}, {s(base+1)}, 0')
    else:
        a(f's_mov_b32 {s(dst)}, {s(base)}')
        a(f's_mov_b32 {s(dst+1)}, {s(base+1)}')
    a(f's_mov_b32 {s(dst+2)}, 0x{size:x}')
    a(f's_mov_b32 {s(dst+3)}, 0x20000')


NST = 14


def stamp(a, k):
    if STAMP and ('g1st' not in EXP or k == 0):
        assert k < NST
        a(f's_memrealtime s[{64+2*k}:{65+2*k}]')


_gs = [0]


def gstamp(a, name):
    if STAMP and 'g1st' in EXP:
        _gs[0] += 1
        print('stamp', _gs[0], name)
        a(f's_memrealtime s[{64+2*_gs[0]}:{65+2*_gs[0]}]')
        a('s_waitcnt lgkmcnt(0)')


def dump_stamps(a, sreg_slot):
    if not STAMP:
        return
    a('s_waitcnt lgkmcnt(0)')
    srd(a, 92, 6, WS_STAMP, 1 << 20)
    a(f's_lshl_b32 s96, {s(sreg_slot)}, 17')
    a('s_lshl_b32 s97, s2, 8')
    a('s_add_u32 s96, s96, s97')
    a('v_lshrrev_b32 v32, 6, v0')
    a('v_lshlrev_b32 v32, 6, v32')
    for k in range(16):
        a(f'v_mov_b32 v{16+k}, ' + (f's{64+2*k}' if k < NST else (s(S_SPIN) if k == 15 else '0')))
    a('s_mov_b64 exec, 1')
    for k in range(4):
        a(f'buffer_store_dwordx4 v[{16+4*k}:{19+4*k}], v32, s[92:95], s96 offen offset:{16*k}')
    a('s_mov_b64 exec, -1')
    a('s_nop 1')


def mfma16(a, d, x, y, c):
    cc = '0' if c is None else v(c, 4)
    a(f'v_mfma_f32_16x16x32_bf16 {v(d,4)}, {v(x,4)}, {v(y,4)}, {cc}')


def angle(a, dst, step, k, base):
    if base is None:
        if k == 0:
            a(f'v_mov_b32 {v(dst)}, 0')
        else:
            a(f'v_mul_f32 {v(dst)}, {f32(k)}, {v(step)}')
    elif k == 0:
        a(f'v_mov_b32 {v(dst)}, {v(base)}')
    elif k == 1:
        a(f'v_add_f32 {v(dst)}, {v(step)}, {v(base)}')
    else:
        a(f'v_fmamk_f32 {v(dst)}, {v(step)}, {f32(k)}, {v(base)}')


def sgn(x, neg):
    return ('-' if neg else '') + v(x)


def rot(c, sn, k):
    k &= 3
    return [((c, 0), (sn, 0)), ((sn, 1), (c, 0)), ((c, 1), (sn, 1)), ((sn, 0), (c, 1))][k]


def neg(x):
    return (x[0], 1 - x[1])


def cvtpk(a, d, lo, hi):
    a(f'v_cvt_pk_bf16_f32 {v(d)}, {sgn(*lo)}, {sgn(*hi)}')


def sincos(a, ang, sn, n):
    for k in range(n):
        a(f'v_sin_f32 {v(sn+k)}, {v(ang+k)}')
        a(f'v_cos_f32 {v(ang+k)}, {v(ang+k)}')


def cmul(a, R, Im, re, im, c, sn, conj):
    for h in (0, 2):
        a(f'v_pk_mul_f32 {v(R+h,2)}, {v(re+h,2)}, {v(c+h,2)}')
        a(f'v_pk_mul_f32 {v(Im+h,2)}, {v(im+h,2)}, {v(c+h,2)}')
    ng = 'neg_lo:[1,0,0] neg_hi:[1,0,0]'
    for h in (0, 2):
        a(f'v_pk_fma_f32 {v(R+h,2)}, {v(im+h,2)}, {v(sn+h,2)}, {v(R+h,2)} {ng if conj else ""}')
        a(f'v_pk_fma_f32 {v(Im+h,2)}, {v(re+h,2)}, {v(sn+h,2)}, {v(Im+h,2)} {"" if conj else ng}')


_lab = [0]


def label(p):
    _lab[0] += 1
    return f'L_{p}_{_lab[0]}'


def tag(a, reg):
    a(f'v_bfi_b32 {v(reg)}, 1, {s(S_LAYER)}, {v(reg)}')


def poll_check(a, loads, regs, tmp, sentinel=False):
    chk, ok = label('chk'), label('ok')
    a(f'{chk}:')
    r = list(regs)
    if sentinel:
        a(f'v_max_u32 {v(tmp)}, {v(r[0])}, {v(r[1])}')
        a(f'v_cmp_eq_u32 vcc, -1, {v(tmp)}')
    else:
        a(f'v_bitop3_b32 {v(tmp)}, {v(r[0])}, {v(r[1])}, {s(S_LAYER)} bitop3:0x7e')
        if len(r) == 4:
            a(f'v_bitop3_b32 {v(tmp+1)}, {v(r[2])}, {v(r[3])}, {s(S_LAYER)} bitop3:0x7e')
            a(f'v_or_b32 {v(tmp)}, {v(tmp)}, {v(tmp+1)}')
        a(f'v_and_b32 {v(tmp)}, 1, {v(tmp)}')
        a(f'v_cmp_ne_u32 vcc, 0, {v(tmp)}')
    a(f's_cbranch_vccz {ok}')
    a(f's_add_u32 {s(S_SPIN)}, {s(S_SPIN)}, 1')
    a(f's_cmp_gt_u32 {s(S_SPIN)}, {SPIN_LIMIT}')
    a(f's_cbranch_scc1 {ok}')
    emit(a, loads)
    a('s_waitcnt vmcnt(0)')
    a(f's_branch {chk}')
    a(f'{ok}:')


def common_setup(a):
    a(f's_bfe_u32 {s(S_RHO)}, s2, 0x20001')
    a(f's_lshl_b32 {s(S_RHO)}, {s(S_RHO)}, 6')
    a('s_lshr_b32 s3, s2, 6')
    a('s_lshl_b32 s3, s3, 4')
    a(f's_add_u32 {s(S_RHO)}, {s(S_RHO)}, s3')
    a('s_and_b32 s3, s2, 1')
    a('s_lshl_b32 s3, s3, 3')
    a(f's_add_u32 {s(S_RHO)}, {s(S_RHO)}, s3')
    a('s_bfe_u32 s3, s2, 0x30003')
    a(f's_add_u32 {s(S_RHO)}, {s(S_RHO)}, s3')
    a(f's_and_b32 {s(S_S2)}, {s(S_RHO)}, 15')
    a(f's_lshl_b32 {s(S_S2)}, {s(S_S2)}, 4')
    a(f's_lshr_b32 s3, {s(S_RHO)}, 4')
    a(f's_add_u32 {s(S_S2)}, {s(S_S2)}, s3')
    a(f'v_and_b32 {v(V_I)}, 15, v0')
    a(f'v_bfe_u32 {v(V_Q)}, v0, 4, 2')
    a(f'v_lshrrev_b32 {v(V_W)}, 6, v0')
    a(f'v_and_b32 {v(T0)}, 63, v0')
    a(f'v_readfirstlane_b32 {s(S_WAVE)}, {v(V_W)}')
    a(f'v_lshlrev_b32 {v(V_LN16)}, 4, {v(T0)}')
    a(f'v_lshlrev_b32 {v(V_T16)}, 4, v0')
    a(f'v_lshrrev_b32 {v(T0)}, 5, v0')
    a(f'v_lshlrev_b32 {v(V_ROWO)}, 18, {v(T0)}')
    a(f'v_and_b32 {v(T0)}, 31, v0')
    a(f'v_lshl_add_u32 {v(V_ROWO)}, {v(T0)}, 4, {v(V_ROWO)}')
    a(f'v_cvt_f32_u32 {v(V_FI)}, {v(V_I)}')
    a(f'v_cvt_f32_u32 {v(V_FQ)}, {v(V_Q)}')
    a(f's_mov_b32 {s(S_SPIN)}, 0')
    a(f's_mov_b32 {s(S_LAYER)}, 0')


class P1R:
    LD = 16
    A = 24
    BC, BS = 56, 64
    DRE, DIM = 72, 88
    TC, TS = 104, 108
    TW = 112
    C2, S2, N2 = 144, 160, 176
    ST = 192
    WA, RA, XA, SA, MASK0, ONES = 208, 209, 210, 211, 212, 213
    TRE, TIM = 24, 40
    FRE, FIM = 56, 64
    D2R, D2I = 72, 80
    OUT = 88
    TMP = 72
    NV = 214


def p1_consts(ldsa, ldsb):
    R = P1R
    a = L()
    TMP = R.TMP
    a(f'v_lshrrev_b32 {v(T0)}, 5, v0')
    a(f'v_and_b32 {v(T1)}, 1, {v(T0)}')
    a(f'v_lshlrev_b32 {v(T1)}, 3, {v(T1)}')
    a(f'v_and_b32 {v(T2)}, 31, v0')
    a(f'v_xor_b32 {v(T1)}, {v(T1)}, {v(T2)}')
    a(f'v_lshlrev_b32 {v(T1)}, 4, {v(T1)}')
    a(f'v_lshl_add_u32 {v(R.WA)}, {v(T0)}, 10, {v(T1)}')
    a(f'v_add_u32 {v(R.WA)}, {ldsa}, {v(R.WA)}')
    a(f'v_lshrrev_b32 {v(T0)}, 2, {v(V_I)}')
    a(f'v_lshl_add_u32 {v(T0)}, {v(V_Q)}, 2, {v(T0)}')
    a(f'v_bfe_u32 {v(T1)}, {v(V_I)}, 1, 1')
    a(f'v_lshlrev_b32 {v(T2)}, 3, {v(T1)}')
    a(f'v_xor_b32 {v(T0)}, {v(T0)}, {v(T2)}')
    a(f'v_lshlrev_b32 {v(T0)}, 4, {v(T0)}')
    a(f'v_lshl_add_u32 {v(T0)}, {v(T1)}, 10, {v(T0)}')
    a(f'v_and_b32 {v(T1)}, 1, {v(V_I)}')
    a(f'v_lshl_add_u32 {v(R.RA)}, {v(T1)}, 3, {v(T0)}')
    a(f'v_add_u32 {v(R.RA)}, {ldsa}, {v(R.RA)}')
    a(f'v_lshrrev_b32 {v(T0)}, 1, {v(V_Q)}')
    a(f'v_lshlrev_b32 {v(T1)}, 3, {v(T0)}')
    a(f'v_xor_b32 {v(T1)}, {v(T1)}, {v(V_I)}')
    a(f'v_lshlrev_b32 {v(T1)}, 4, {v(T1)}')
    a(f'v_lshl_add_u32 {v(T2)}, {v(V_W)}, 1, {v(T0)}')
    a(f'v_lshl_add_u32 {v(T1)}, {v(T2)}, 10, {v(T1)}')
    a(f'v_and_b32 {v(T2)}, 1, {v(V_Q)}')
    a(f'v_lshl_add_u32 {v(R.XA)}, {v(T2)}, 3, {v(T1)}')
    a(f'v_add_u32 {v(R.XA)}, {ldsa}, {v(R.XA)}')
    a(f'v_lshlrev_b32 {v(T1)}, 4, {v(V_Q)}')
    a(f'v_lshl_add_u32 {v(R.SA)}, {v(V_W)}, 2, {v(T1)}')
    a(f'v_add_u32 {v(R.SA)}, {ldsb}, {v(R.SA)}')
    a(f'v_lshlrev_b32 {v(T6)}, 5, {v(T0)}')
    a(f'v_add_u32 {v(T6)}, {ldsb}, {v(T6)}')
    a(f'v_mov_b32 {v(R.ONES)}, 0x3f803f80')
    a(f'v_lshl_add_u32 {v(T3)}, {v(V_W)}, 4, {v(V_I)}')
    a(f'v_cvt_f32_u32 {v(T0)}, {v(T3)}')
    a(f'v_mul_f32 {v(T1)}, {f32(1/64)}, {v(T0)}')
    a(f'v_mul_f32 {v(T2)}, {v(T0)}, {v(V_FQ)}')
    a(f'v_mul_f32 {v(T2)}, {f32(1/16)}, {v(T2)}')
    for e in range(8):
        angle(a, TMP + e, T1, 16*(e >> 2) + (e & 3), T2)
    sincos(a, TMP, TMP + 8, 8)
    a(f'v_and_b32 {v(T4)}, 1, {v(V_I)}')
    a('s_mov_b32 s28, 0x80008000')
    a(f'v_mul_lo_u32 {v(T4)}, {v(T4)}, s28')
    for j in range(4):
        cvtpk(a, R.BC + j, (TMP + 2*j, 0), (TMP + 2*j + 1, 0))
        cvtpk(a, R.BS + j, (TMP + 8 + 2*j, 1), (TMP + 8 + 2*j + 1, 1))
    for j in range(4):
        a(f'v_xor_b32 {v(R.BC+4+j)}, {v(R.BC+j)}, {v(T4)}')
        a(f'v_xor_b32 {v(R.BS+4+j)}, {v(R.BS+j)}, {v(T4)}')
    a(f'v_cmp_eq_u32 vcc, 0, {v(T3)}')
    a(f'v_mov_b32 {v(T1)}, {f32(256.0)}')
    a(f'v_mov_b32 {v(T2)}, {f32(-0.125)}')
    a(f'v_cndmask_b32 {v(T0)}, {v(T0)}, {v(T1)}, vcc')
    a(f'v_cndmask_b32 {v(R.MASK0)}, 0, {v(T2)}, vcc')
    a(f'v_mul_f32 {v(T0)}, {f32(1/512)}, {v(T0)}')
    a(f'v_and_b32 {v(T1)}, 1, {v(V_Q)}')
    a(f'v_cvt_f32_u32 {v(T5)}, {v(T1)}')
    a(f'v_mul_f32 {v(T1)}, {v(T5)}, {v(T0)}')
    a(f'v_mul_f32 {v(T1)}, 4.0, {v(T1)}')
    for r in range(4):
        angle(a, R.TC + r, T0, r, T1)
    sincos(a, R.TC, R.TS, 4)
    a(f'v_and_b32 {v(T0)}, 7, {v(V_I)}')
    a(f'v_cvt_f32_u32 {v(T0)}, {v(T0)}')
    a(f'v_mul_f32 {v(T0)}, {f32(1/8)}, {v(T0)}')
    a(f'v_lshrrev_b32 {v(T1)}, 3, {v(V_I)}')
    a(f'v_cvt_f32_u32 {v(T1)}, {v(T1)}')
    a(f'v_mul_f32 {v(T1)}, {f32(1/8)}, {v(T1)}')
    a(f'v_lshrrev_b32 {v(T2)}, 1, {v(V_Q)}')
    a(f'v_cvt_f32_u32 {v(T2)}, {v(T2)}')
    a(f'v_mul_f32 {v(T2)}, {v(T2)}, {v(T0)}')
    a(f'v_mul_f32 {v(T5)}, {v(T5)}, {v(T1)}')
    a(f'v_fmamk_f32 {v(T2)}, {v(T5)}, {f32(4.0)}, {v(T2)}')
    a(f'v_fmamk_f32 {v(T3)}, {v(T0)}, {f32(2.0)}, {v(T2)}')
    for mt in range(2):
        for r in range(4):
            angle(a, TMP + 4*mt + r, T1, r, T3 if mt else T2)
    sincos(a, TMP, TMP + 8, 8)
    for m in range(2):
        for jj in range(4):
            mt, r0 = jj >> 1, 2*(jj & 1)
            k0 = 4*mt + r0
            c0, s0 = rot(TMP + k0, TMP + 8 + k0, r0*m)
            c1, s1 = rot(TMP + k0 + 1, TMP + 8 + k0 + 1, (r0 + 1)*m)
            o = 8*m + jj
            cvtpk(a, R.C2 + o, c0, c1)
            cvtpk(a, R.S2 + o, s0, s1)
            cvtpk(a, R.N2 + o, neg(s0), neg(s1))
    for m in range(2):
        for jj in range(4):
            o = 8*m + jj
            for B in (R.C2, R.S2, R.N2):
                a(f'v_xor_b32 {v(B+o+4)}, {v(B+o)}, {v(T4)}')
    return a


def p1_body(a, ssoff, flags, keep_res, side=()):
    R = P1R
    for k in range(2):
        a(f'ds_write_b128 {v(R.WA)}, {v(R.LD+4*k,4)} offset:{512*k}')
    a('s_waitcnt lgkmcnt(0)')
    a('s_barrier')
    for mt in range(4):
        for t in range(2):
            for h in range(2):
                a(f'ds_read_b64_tr_b16 {v(R.A+8*mt+4*t+2*h,2)}, {v(R.RA)} offset:{2048*mt+512*t+256*h}')
    ST = R.ST
    a(f'v_mov_b32 {v(ST)}, 0')
    a(f'v_mov_b32 {v(ST+1)}, 0')
    for k in range(8):
        a(f'v_dot2c_f32_bf16 {v(ST)}, {v(R.LD+k)}, {v(R.ONES)}')
        a(f'v_dot2c_f32_bf16 {v(ST+1)}, {v(R.LD+k)}, {v(R.LD+k)}')
    for mt in range(4):
        a(f's_waitcnt lgkmcnt({12 - 4*mt})')
        for t in range(2):
            fr = R.A + 8*mt + 4*t
            mfma16(a, R.DRE + 4*mt, fr, R.BC + 4*t, None if t == 0 else R.DRE + 4*mt)
            mfma16(a, R.DIM + 4*mt, fr, R.BS + 4*t, None if t == 0 else R.DIM + 4*mt)
        if mt == 0:
            a(f'v_permlane16_swap_b32 {v(ST)}, {v(ST+1)}')
            a(f'v_add_f32 {v(ST)}, {v(ST)}, {v(ST+1)}')
        if mt == 1:
            for sh in (8, 4):
                a(f'v_add_f32_dpp {v(ST)}, {v(ST)}, {v(ST)} row_ror:{sh} row_mask:0xf bank_mask:0xf')
        if mt == 2:
            for sh in (2, 1):
                a(f'v_add_f32_dpp {v(ST)}, {v(ST)}, {v(ST)} row_ror:{sh} row_mask:0xf bank_mask:0xf')
    a(f'ds_write_b32 {v(R.SA)}, {v(ST)}')
    if keep_res:
        for nt in range(4):
            a(f'ds_read_b64 {ar(A_XR+2*nt,2)}, {v(R.XA)} offset:{256*nt}')
    a('s_waitcnt lgkmcnt(0)')
    a('s_barrier')
    a(f'ds_read_b128 {v(ST,4)}, {v(T6)}')
    a(f'ds_read_b128 {v(ST+4,4)}, {v(T6)} offset:16')
    for g in side:
        emit(a, g)
    a('s_waitcnt lgkmcnt(0)')
    a(f's_mov_b32 s28, {f32(1/512)}')
    a(f's_mov_b32 s29, {f32(1e-5)}')
    for k in range(4):
        a(f'v_mul_f32 {v(ST+8+k)}, {v(ST+k)}, {v(R.MASK0)}')
    for k in range(4):
        a(f'v_mul_f32 {v(ST+k)}, s28, {v(ST+k)}')
        a(f'v_mul_f32 {v(ST+4+k)}, s28, {v(ST+4+k)}')
    for k in range(4):
        a(f'v_fma_f32 {v(ST+4+k)}, -{v(ST+k)}, {v(ST+k)}, {v(ST+4+k)}')
    for k in range(4):
        a(f'v_max_f32 {v(ST+4+k)}, 0, {v(ST+4+k)}')
    for k in range(4):
        a(f'v_add_f32 {v(ST+4+k)}, s29, {v(ST+4+k)}')
    for k in range(4):
        a(f'v_rsq_f32 {v(ST+4+k)}, {v(ST+4+k)}')
    for u in range(2):
        for mt in (2*u, 2*u + 1):
            z = mt & 1
            sel = f'op_sel:[0,{z}] op_sel_hi:[1,{z}]'
            for h in (0, 2):
                a(f'v_pk_add_f32 {v(R.DRE+4*mt+h,2)}, {v(R.DRE+4*mt+h,2)}, {v(ST+8+2*u,2)} {sel}')
            for k in range(4):
                a(f'v_pk_mul_f32 {v(R.TW+8*mt+2*k,2)}, {v(R.TC+2*k,2)}, {v(ST+4+2*u,2)} {sel}')
            cmul(a, R.TRE + 4*mt, R.TIM + 4*mt, R.DRE + 4*mt, R.DIM + 4*mt, R.TW + 8*mt, R.TW + 8*mt + 4, 0)
        for jj in range(4):
            k = 8*u + 2*jj
            cvtpk(a, R.FRE + 4*u + jj, (R.TRE + k, 0), (R.TRE + k + 1, 0))
            cvtpk(a, R.FIM + 4*u + jj, (R.TIM + k, 0), (R.TIM + k + 1, 0))
    for u in range(2):
        for m in range(2):
            o = 8*m + 4*u
            mfma16(a, R.D2R + 4*m, R.C2 + o, R.FRE + 4*u, None if u == 0 else R.D2R + 4*m)
            mfma16(a, R.D2I + 4*m, R.C2 + o, R.FIM + 4*u, None if u == 0 else R.D2I + 4*m)
        for m in range(2):
            o = 8*m + 4*u
            mfma16(a, R.D2R + 4*m, R.S2 + o, R.FIM + 4*u, R.D2R + 4*m)
            mfma16(a, R.D2I + 4*m, R.N2 + o, R.FRE + 4*u, R.D2I + 4*m)
    for m in range(2):
        for r in range(4):
            cvtpk(a, R.OUT + 4*m + r, (R.D2R + 4*m + r, 0), (R.D2I + 4*m + r, 0))
        tag(a, R.OUT + 4*m)
        a(f'buffer_store_dwordx4 {v(R.OUT+4*m,4)}, {v(V_LN16)}, {s(S_WS,4)}, {s(ssoff)} offen offset:{1024*m} {flags}')


class P2R:
    LD = 16
    X = 24
    WR, WI = 32, 40
    B1R, B1I = 48, 56
    T1C, T1S = 64, 72
    F2R, F2I, F3R, F3I = 80, 84, 88, 92
    T2C, T2S = 96, 104
    A4R, A4I = 112, 120
    DR, DI = 128, 136
    RR, RI = 144, 152
    TMP = 160
    OUT = 168
    GA, LA, FA, FQ4 = 176, 177, 178, 179


def p2_addr():
    R = P2R
    a = L()
    a(f'v_lshlrev_b32 {v(R.GA)}, 13, v0')
    a(f's_lshr_b32 s30, {s(S_RHO)}, 4')
    a('s_lshl_b32 s30, s30, 9')
    a(f's_and_b32 s31, {s(S_RHO)}, 15')
    a('s_lshl_b32 s31, s31, 4')
    a('s_add_u32 s30, s30, s31')
    return a


def p2_loads():
    R = P2R
    return [f'buffer_load_dwordx4 {v(R.LD+4*h,4)}, {v(R.GA)}, {s(S_WS,4)}, s30 offen offset:{256*h} sc1' for h in range(2)]


def p2_consts():
    R = P2R
    a = L()
    TMP = R.TMP
    a(f'v_lshlrev_b32 {v(R.LA)}, 2, v0')
    a(f'v_add_u32 {v(R.LA)}, {LDS_A}, {v(R.LA)}')
    a(f'v_lshlrev_b32 {v(R.FA)}, 11, {v(V_W)}')
    a(f'v_lshl_add_u32 {v(R.FA)}, {v(V_I)}, 6, {v(R.FA)}')
    a(f'v_lshl_add_u32 {v(R.FA)}, {v(V_Q)}, 4, {v(R.FA)}')
    a(f'v_add_u32 {v(R.FA)}, {LDS_A}, {v(R.FA)}')
    a(f'v_mul_f32 {v(R.FQ4)}, 4.0, {v(V_FQ)}')
    a(f's_mov_b32 s29, {f32(2.0**-19)}')
    a(f's_cmp_eq_u32 {s(S_RHO)}, 0\ns_cselect_b32 s29, {f32(2.0**-20)}, s29')
    for z in range(2):
        a(f'v_lshlrev_b32 {v(T0)}, 1, {v(V_W)}')
        a(f'v_lshl_add_u32 {v(T0)}, {v(V_I)}, 3, {v(T0)}')
        if z:
            a(f'v_add_u32 {v(T0)}, 1, {v(T0)}')
        a(f'v_cvt_f32_u32 {v(T0)}, {v(T0)}')
        a(f'v_mul_f32 {v(T0)}, {f32(1/128)}, {v(T0)}')
        a(f'v_mul_f32 {v(T1)}, {v(T0)}, {v(R.FQ4)}')
        for r in range(4):
            angle(a, TMP + r, T0, r, T1)
        for r in range(4):
            a(f'v_mul_f32 {v(R.T1C+4*z+r)}, {f32(1/16)}, {v(TMP+r)}')
        sincos(a, TMP, TMP + 4, 4)
        sincos(a, R.T1C + 4*z, R.T1S + 4*z, 4)
        for r in range(4):
            cvtpk(a, R.B1R + 4*z + r, (TMP + r, 0), (TMP + 4 + r, 0))
            cvtpk(a, R.B1I + 4*z + r, (TMP + 4 + r, 1), (TMP + r, 0))
    a(f'v_mul_f32 {v(T0)}, {f32(1/16)}, {v(V_FI)}')
    a(f'v_mul_f32 {v(T1)}, {v(T0)}, {v(R.FQ4)}')
    for r in range(4):
        angle(a, TMP + r, T0, r, T1)
    sincos(a, TMP, TMP + 4, 4)
    a('v_nop')
    for r in range(4):
        cvtpk(a, R.F2R + r, (TMP + r, 0), (TMP + 4 + r, 0))
        cvtpk(a, R.F2I + r, (TMP + 4 + r, 1), (TMP + r, 0))
        cvtpk(a, R.F3R + r, (TMP + r, 0), (TMP + 4 + r, 1))
        cvtpk(a, R.F3I + r, (TMP + 4 + r, 0), (TMP + r, 0))
    for z in range(2):
        a(f'v_lshlrev_b32 {v(T2)}, 1, {v(V_W)}')
        a(f'v_lshl_add_u32 {v(T2)}, {v(V_Q)}, 5, {v(T2)}')
        if z:
            a(f'v_add_u32 {v(T2)}, 1, {v(T2)}')
        a(f'v_cvt_f32_u32 {v(T2)}, {v(T2)}')
        a(f'v_mul_f32 {v(T2)}, {v(T2)}, {v(V_FI)}')
        a(f'v_mul_f32 {v(T2)}, {f32(1/128)}, {v(T2)}')
        for r in range(4):
            angle(a, TMP + r, T0, r, T2)
        for r in range(4):
            a(f'v_mul_f32 {v(R.T2C+4*z+r)}, {f32(1/16)}, {v(TMP+r)}')
        sincos(a, TMP, TMP + 4, 4)
        sincos(a, R.T2C + 4*z, R.T2S + 4*z, 4)
        for r in range(4):
            cvtpk(a, R.A4R + 4*z + r, (TMP + r, 0), (TMP + 4 + r, 1))
            cvtpk(a, R.A4I + 4*z + r, (TMP + 4 + r, 0), (TMP + r, 0))
        for r in range(4):
            a(f'v_mul_f32 {v(R.T2C+4*z+r)}, s29, {v(R.T2C+4*z+r)}')
            a(f'v_mul_f32 {v(R.T2S+4*z+r)}, s29, {v(R.T2S+4*z+r)}')
    a(f's_lshl_b32 s31, {s(S_RHO)}, 13')
    a(f's_add_u32 s31, s31, {O_V}')
    a('s_add_u32 s32, s31, 4096')
    return a


def p2_unpack_w():
    R = P2R
    a = L()
    for k in range(8):
        a(f'v_accvgpr_read_b32 {v(R.WI+k)}, {ar(A_WP+k)}')
    for k in range(8):
        a(f'v_lshlrev_b32 {v(R.WR+k)}, 16, {v(R.WI+k)}')
        a(f'v_and_b32 {v(R.WI+k)}, 0xffff0000, {v(R.WI+k)}')
    return a


def p2_body(a):
    R = P2R
    for k in range(4):
        a(f'ds_write2st64_b32 {v(R.LA)}, {v(R.LD+2*k)}, {v(R.LD+2*k+1)} offset0:{8*k} offset1:{8*k+4}')
    a('s_waitcnt lgkmcnt(0)')
    a('s_barrier')
    for z in range(2):
        a(f'ds_read_b128 {v(R.X+4*z,4)}, {v(R.FA)} offset:{1024*z}')
    emit(a, p2_unpack_w())
    a('s_waitcnt lgkmcnt(0)')
    for z in range(2):
        mfma16(a, R.DR + 4*z, R.X + 4*z, R.B1R + 4*z, None)
        mfma16(a, R.DI + 4*z, R.X + 4*z, R.B1I + 4*z, None)

    def pack(z):
        for r in range(4):
            cvtpk(a, R.X + 4*z + r, (R.RR + 4*z + r, 0), (R.RI + 4*z + r, 0))
    for z in range(2):
        cmul(a, R.RR + 4*z, R.RI + 4*z, R.DR + 4*z, R.DI + 4*z, R.T1C + 4*z, R.T1S + 4*z, 0)
        pack(z)
        mfma16(a, R.DR + 4*z, R.F2R, R.X + 4*z, None)
        mfma16(a, R.DI + 4*z, R.F2I, R.X + 4*z, None)
    for z in range(2):
        cmul(a, R.RR + 4*z, R.RI + 4*z, R.DR + 4*z, R.DI + 4*z, R.WR + 4*z, R.WI + 4*z, 1)
        pack(z)
        mfma16(a, R.DR + 4*z, R.X + 4*z, R.F3R, None)
        mfma16(a, R.DI + 4*z, R.X + 4*z, R.F3I, None)
    for z in range(2):
        cmul(a, R.RR + 4*z, R.RI + 4*z, R.DR + 4*z, R.DI + 4*z, R.T2C + 4*z, R.T2S + 4*z, 1)
        pack(z)
        mfma16(a, R.DR + 4*z, R.A4R + 4*z, R.X + 4*z, None)
        mfma16(a, R.DI + 4*z, R.A4I + 4*z, R.X + 4*z, None)
    for z in range(2):
        for r in range(4):
            cvtpk(a, R.OUT + 4*z + r, (R.DR + 4*z + r, 0), (R.DI + 4*z + r, 0))
        a(f'ds_write_b128 {v(R.FA)}, {v(R.OUT+4*z,4)} offset:{8192+1024*z}')
    a('s_waitcnt lgkmcnt(0)')
    a('s_barrier')
    for k in range(4):
        a(f'ds_read2st64_b32 {v(R.LD+2*k,2)}, {v(R.LA)} offset0:{32+8*k} offset1:{32+8*k+4}')
    for h in range(2):
        a(f's_waitcnt lgkmcnt({2-2*h})')
        tag(a, R.LD + 4*h)
        a(f'buffer_store_dwordx4 {v(R.LD+4*h,4)}, {v(V_T16)}, {s(S_WS,4)}, s{31+h} offen sc1')


class P3R:
    LD = 24
    VD = 32
    BAR, BAI = 64, 72
    TC, TS = 80, 96
    BB = 112
    DR, DI = 176, 192
    RR, RI = 32, 48
    FB = 208
    Y = 224
    TMP = 176
    ST = 240
    O1, O2 = 112, 120
    GA, WA, RA, NW, NR, NO = 244, 245, 246, 247, 248, 249


def p3_addr():
    R = P3R
    a = L()
    a(f'v_lshlrev_b32 {v(R.GA)}, 13, v0')
    a(f's_lshl_b32 s33, {s(S_RHO)}, 4')
    a(f's_add_u32 s33, s33, {O_V}')
    a('s_add_u32 s34, s33, 4096')
    return a


def p3_loads():
    R = P3R
    return [f'buffer_load_dwordx4 {v(R.LD+4*h,4)}, {v(R.GA)}, {s(S_WS,4)}, s{33+h} offen sc1' for h in range(2)]


def p3_consts():
    R = P3R
    a = L()
    TMP = R.TMP
    a(f'v_add_u32 {v(R.RA)}, {LDS_A}, {v(V_LN16)}')
    a(f'v_lshl_add_u32 {v(R.WA)}, {v(V_W)}, 11, {v(R.RA)}')
    a(f'v_lshrrev_b32 {v(T0)}, 5, v0')
    a(f'v_and_b32 {v(T1)}, 7, v0')
    a(f'v_xor_b32 {v(T0)}, {v(T0)}, {v(T1)}')
    a(f'v_lshlrev_b32 {v(T0)}, 4, {v(T0)}')
    a(f'v_and_b32 {v(T2)}, 31, v0')
    a(f'v_lshl_add_u32 {v(R.NW)}, {v(T2)}, 7, {v(T0)}')
    a(f'v_add_u32 {v(R.NW)}, {LDS_B}, {v(R.NW)}')
    a(f'v_lshrrev_b32 {v(T0)}, 3, v0')
    a(f'v_and_b32 {v(T2)}, 7, {v(T0)}')
    a(f'v_xor_b32 {v(T2)}, {v(T2)}, {v(T1)}')
    a(f'v_lshlrev_b32 {v(T2)}, 4, {v(T2)}')
    a(f'v_lshl_add_u32 {v(R.NR)}, {v(T0)}, 7, {v(T2)}')
    a(f'v_add_u32 {v(R.NR)}, {LDS_B}, {v(R.NR)}')
    a(f'v_lshlrev_b32 {v(T1)}, 4, {v(T1)}')
    a(f'v_lshl_add_u32 {v(R.NO)}, {v(T0)}, 9, {v(T1)}')
    a(f's_lshr_b32 s35, {s(S_RHO)}, 2')
    a('s_lshl_b32 s35, s35, 15')
    a(f's_and_b32 s36, {s(S_RHO)}, 3')
    a('s_lshl_b32 s36, s36, 7')
    a('s_add_u32 s35, s35, s36')
    a(f's_add_u32 s35, s35, {O_XN}')
    a('s_add_u32 s36, s35, 16384')
    a(f's_lshl_b32 s37, {s(S_S2)}, 10')
    a(f's_add_u32 s37, s37, {O_X1}')
    a(f'v_lshrrev_b32 {v(T0)}, 3, {v(V_I)}')
    a(f'v_lshl_add_u32 {v(T0)}, {v(V_W)}, 1, {v(T0)}')
    a(f'v_cvt_f32_u32 {v(T0)}, {v(T0)}')
    a(f'v_mul_f32 {v(T0)}, {f32(1/8)}, {v(T0)}')
    a(f'v_and_b32 {v(T1)}, 7, {v(V_I)}')
    a(f'v_cvt_f32_u32 {v(T1)}, {v(T1)}')
    a(f'v_mul_f32 {v(T2)}, {v(T1)}, {v(V_FQ)}')
    a(f'v_mul_f32 {v(T3)}, {f32(1/8)}, {v(T2)}')
    for k in range(8):
        angle(a, TMP + k, T0, k, T3)
    sincos(a, TMP, TMP + 8, 8)
    a(f'v_mul_f32 {v(T0)}, {f32(1/512)}, {v(T1)}')
    for k in range(8):
        cvtpk(a, R.BAR + k, (TMP + k, 0), (TMP + 8 + k, 1))
        cvtpk(a, R.BAI + k, (TMP + 8 + k, 0), (TMP + k, 0))
    a(f'v_mul_f32 {v(T3)}, {f32(1/128)}, {v(T2)}')
    for mt in range(4):
        for r in range(4):
            angle(a, R.TC + 4*mt + r, T0, 16*mt + r, T3)
    a(f'v_cmp_eq_u32 vcc, 0, {v(V_Q)}')
    a(f'v_mul_f32 {v(T1)}, 0.5, {v(T1)}')
    a(f'v_mul_f32 {v(T0)}, {f32(1/64)}, {v(V_FI)}')
    a(f'v_cndmask_b32 {v(R.TC)}, {v(R.TC)}, {v(T1)}, vcc')
    sincos(a, R.TC, R.TS, 16)
    a(f'v_mul_f32 {v(T3)}, {v(V_FI)}, {v(V_FQ)}')
    a(f'v_mul_f32 {v(T3)}, {f32(1/16)}, {v(T3)}')
    for mt in range(2):
        for r in range(4):
            angle(a, TMP + 4*mt + r, T0, 16*mt + r, T3)
    sincos(a, TMP, TMP + 8, 8)
    a(f'v_and_b32 {v(T2)}, 1, {v(V_I)}')
    a('s_mov_b32 s28, 0x80008000')
    a(f'v_mul_lo_u32 {v(T2)}, {v(T2)}, s28')
    for mt in range(2):
        for nt in range(4):
            for r in range(4):
                c, sn = rot(TMP + 4*mt + r, TMP + 8 + 4*mt + r, nt*r)
                cvtpk(a, R.BB + 16*mt + 4*nt + r, c, neg(sn))
    for k in range(32):
        a(f'v_xor_b32 {v(R.BB+32+k)}, {v(R.BB+k)}, {v(T2)}')
    for k in range(8):
        a(f'v_accvgpr_read_b32 {v(R.Y+2*k+1)}, {ar(A_XR+k)}')
    for k in range(8):
        a(f'v_lshlrev_b32 {v(R.Y+2*k)}, 16, {v(R.Y+2*k+1)}')
        a(f'v_and_b32 {v(R.Y+2*k+1)}, 0xffff0000, {v(R.Y+2*k+1)}')
    return a


def p3_body(a):
    R = P3R
    Y, ST = R.Y, R.ST
    for h in range(2):
        a(f'ds_write_b128 {v(R.WA)}, {v(R.LD+4*h,4)} offset:{1024*h}')
    a('s_waitcnt lgkmcnt(0)')
    a('s_barrier')
    for k in range(8):
        a(f'ds_read_b128 {v(R.VD+4*k,4)}, {v(R.RA)} offset:{1024*k}')
    for mt in range(4):
        a(f's_waitcnt lgkmcnt({6 - 2*mt})')
        for t in range(2):
            mfma16(a, R.DR + 4*mt, R.VD + 8*mt + 4*t, R.BAR + 4*t, None if t == 0 else R.DR + 4*mt)
            mfma16(a, R.DI + 4*mt, R.VD + 8*mt + 4*t, R.BAI + 4*t, None if t == 0 else R.DI + 4*mt)
    for mt in range(4):
        cmul(a, R.RR + 4*mt, R.RI + 4*mt, R.DR + 4*mt, R.DI + 4*mt, R.TC + 4*mt, R.TS + 4*mt, 1)
        for r in range(4):
            cvtpk(a, R.FB + 4*mt + r, (R.RR + 4*mt + r, 0), (R.RI + 4*mt + r, 0))
        for nt in range(4):
            mfma16(a, Y + 4*nt, R.FB + 4*mt, R.BB + 16*mt + 4*nt, Y + 4*nt)
    a(f'v_pk_add_f32 {v(ST,2)}, {v(Y,2)}, {v(Y+2,2)}')
    a(f'v_pk_mul_f32 {v(ST+2,2)}, {v(Y,2)}, {v(Y,2)}')
    a(f'v_pk_fma_f32 {v(ST+2,2)}, {v(Y+2,2)}, {v(Y+2,2)}, {v(ST+2,2)}')
    for k in range(2, 8):
        a(f'v_pk_add_f32 {v(ST,2)}, {v(ST,2)}, {v(Y+2*k,2)}')
        a(f'v_pk_fma_f32 {v(ST+2,2)}, {v(Y+2*k,2)}, {v(Y+2*k,2)}, {v(ST+2,2)}')
    a(f'v_add_f32 {v(ST)}, {v(ST)}, {v(ST+1)}')
    a(f'v_add_f32 {v(ST+2)}, {v(ST+2)}, {v(ST+3)}')
    x1 = L()
    for k in range(8):
        cvtpk(x1, R.O1 + k, (Y + 2*k, 0), (Y + 2*k + 1, 0))
    for i, sh in enumerate((8, 4, 2, 1)):
        a(x1[2*i])
        a(f'v_add_f32_dpp {v(ST)}, {v(ST)}, {v(ST)} row_ror:{sh} row_mask:0xf bank_mask:0xf')
        a(f'v_add_f32_dpp {v(ST+2)}, {v(ST+2)}, {v(ST+2)} row_ror:{sh} row_mask:0xf bank_mask:0xf')
        a(x1[2*i+1])
    a(f'v_mov_b32 {v(ST+1)}, {v(ST)}')
    a(f'v_mov_b32 {v(ST+3)}, {v(ST+2)}')
    a(f'v_permlane16_swap_b32 {v(ST)}, {v(ST+1)}')
    a(f'v_permlane16_swap_b32 {v(ST+2)}, {v(ST+3)}')
    a(f'v_add_f32 {v(ST)}, {v(ST)}, {v(ST+1)}')
    a(f'v_add_f32 {v(ST+2)}, {v(ST+2)}, {v(ST+3)}')
    a(f'v_mul_f32 {v(ST)}, {f32(1/512)}, {v(ST)}')
    a(f'v_mul_f32 {v(ST+2)}, {f32(1/512)}, {v(ST+2)}')
    a(f'v_fma_f32 {v(ST+2)}, -{v(ST)}, {v(ST)}, {v(ST+2)}')
    a(f'v_max_f32 {v(ST+2)}, 0, {v(ST+2)}')
    a(f'v_add_f32 {v(ST+2)}, {f32(1e-5)}, {v(ST+2)}')
    a(f'v_rsq_f32 {v(ST+2)}, {v(ST+2)}')
    a(f'v_mul_f32 {v(ST+3)}, -{v(ST)}, {v(ST+2)}')
    for k in range(8):
        a(f'v_pk_fma_f32 {v(Y+2*k,2)}, {v(Y+2*k,2)}, {v(ST+2,2)}, {v(ST+2,2)} op_sel:[0,0,1] op_sel_hi:[1,0,1]')
    for k in range(8):
        cvtpk(a, R.O2 + k, (Y + 2*k, 0), (Y + 2*k + 1, 0))
    for k in range(2):
        for d in range(2):
            a(f'v_permlane16_swap_b32 {v(R.O2+4*k+d)}, {v(R.O2+4*k+2+d)}')
        tag(a, R.O2 + 4*k)
        a(f'ds_write_b128 {v(R.NW)}, {v(R.O2+4*k,4)} offset:{4096*k}')
    for k in range(2):
        for d in range(2):
            a(f'v_permlane16_swap_b32 {v(R.O1+4*k+d)}, {v(R.O1+4*k+2+d)}')
    a('s_waitcnt lgkmcnt(0)')
    a('s_barrier')
    for k in range(2):
        a(f'ds_read_b128 {v(R.FB+4*k,4)}, {v(R.NR)} offset:{4096*k}')
    for k in range(2):
        a(f's_waitcnt lgkmcnt({1-k})')
        a(f'buffer_store_dwordx4 {v(R.FB+4*k,4)}, {v(R.NO)}, {s(S_WS,4)}, s{35+k} offen sc1')
    for k in range(2):
        a(f'buffer_store_dwordx4 {v(R.O1+4*k,4)}, {v(V_ROWO)}, {s(S_WS,4)}, s37 offen offset:{512*k} sc1')


def frag_info(n):
    na = 32*PA
    if n < na:
        ks, blk = divmod(n, PA)
        return blk, ks
    n -= na
    blk, ks = divmod(n, 32)
    return PA + blk, ks


S_WG = 38


def dma_groups(first, count):
    assert count % 4 == 0
    per = count // 4
    groups = []
    for k in range(per):
        g = []
        if k == 0:
            g.append(f's_mul_i32 s40, {s(S_WAVE)}, {per*1024}')
        if k % 4 == 0:
            g.append(f's_add_u32 s39, s40, {(first + k)*1024}')
            g.append(f's_add_u32 s39, s39, {s(S_WG)}')
            g.append(f's_add_u32 m0, s40, {((first % RING) + k)*1024}')
        g.append(f'buffer_load_dwordx4 {v(V_LN16)}, {s(S_WS,4)}, s39 offen offset:{1024*(k & 3)} lds')
        groups.append(g)
    return groups


class VM:
    def __init__(self, a):
        self.a = a
        self.ops = []

    def op(self, text, tag, l0=False):
        self.a(text)
        self.ops.append((tag, l0))

    def wait(self, tag):
        idx = max(i for i, t in enumerate(self.ops) if t[0] == tag)
        n0 = min(len(self.ops) - 1 - idx, 63)
        n1 = min(sum(1 for t in self.ops[idx+1:] if not t[1]), 63)
        self.a(f's_waitcnt vmcnt({n0})')
        if n1 != n0:
            lab = label('w')
            self.a(f's_cmp_eq_u32 {s(S_LAYER)}, 0')
            self.a(f's_cbranch_scc1 {lab}')
            self.a(f's_waitcnt vmcnt({n1})')
            self.a(f'{lab}:')


ACT, ACC, WF = 16, 144, 224
V_FLO, V_FLD, V_HO, V_RD = T0, T1, T2, T3


def g2_out_addr(a, EO, tmp):
    a(f'v_bfe_u32 {v(tmp)}, v0, 3, 3')
    a(f'v_lshlrev_b32 {v(EO)}, 18, {v(tmp)}')
    a(f'v_and_b32 {v(tmp)}, 7, v0')
    a(f'v_lshl_add_u32 {v(EO)}, {v(tmp)}, 4, {v(EO)}')
    a(f's_bfe_u32 s57, {s(S_RHO)}, 0x10003')
    a('s_lshl_b32 s57, s57, 7')
    a(f's_lshr_b32 s58, {s(S_RHO)}, 4')
    a('s_add_u32 s57, s57, s58')
    a(f's_lshl_b32 s58, {s(S_WAVE)}, 5')
    a('s_add_u32 s57, s57, s58')
    a('s_lshl_b32 s57, s57, 10')
    a(f's_and_b32 s58, {s(S_RHO)}, 7')
    a('s_lshl_b32 s58, s58, 7')
    a('s_add_u32 s57, s57, s58')
    a('s_add_u32 s58, s57, 16384')


S_WDB = 23


def wd_group(j0):
    g = [f's_add_u32 s56, {s(S_WDB)}, {j0*1024}']
    for k in range(4):
        g.append(f'buffer_load_dwordx4 {ar(4*(j0+k),4)}, {v(V_LN16)}, {s(S_WS,4)}, s56 offen offset:{k*1024}')
    return g


def l0_only(ops):
    lab = label('l0')
    return [f's_cmp_eq_u32 {s(S_LAYER)}, 0\ns_cbranch_scc0 {lab}'] + list(ops) + [f'{lab}:']


def wait2(a, n0, n1):
    a(f's_waitcnt vmcnt({n0})')
    if n0 != n1:
        lab = label('w')
        a(f's_cmp_eq_u32 {s(S_LAYER)}, 0')
        a(f's_cbranch_scc1 {lab}')
        a(f's_waitcnt vmcnt({n1})')
        a(f'{lab}:')


def mfma32(a, d, x, y, c):
    a(f'v_mfma_f32_32x32x16_bf16 {v(d,16)}, {x}, {y}, ' + ('0' if c is None else v(c, 16)))


def ffn(a, wd_first):
    D = 5
    vm = VM(a)
    SETS = [144, 160, 176, 192, 208]
    accb = {0: SETS[0], 1: SETS[1], 2: SETS[2], 3: SETS[3], 4: SETS[4], 5: SETS[3], 6: SETS[2]}
    G2T = [WF, WF + 16, SETS[3], SETS[4]]
    V_CHK = T0
    HB = 28
    a(f's_lshr_b32 s43, {s(S_RHO)}, 4')
    a('s_lshl_b32 s43, s43, 2')
    a(f's_add_u32 s43, s43, {s(S_WAVE)}')
    a('s_lshl_b32 s44, s43, 15')
    a(f's_add_u32 s44, s44, {O_XN}')
    a('s_mul_i32 s45, s43, 114688')
    a(f's_and_b32 s46, {s(S_RHO)}, 15')
    a('s_mul_i32 s46, s46, 7168')
    a('s_add_u32 s45, s45, s46')
    a(f's_add_u32 s45, s45, {O_H}')
    a('s_add_u32 s46, s45, 4096')
    a(f's_lshr_b32 s48, {s(S_RHO)}, 3')
    a('s_mul_i32 s50, s48, 229376')
    a(f's_mul_i32 s51, {s(S_WAVE)}, 28672')
    a('s_add_u32 s50, s50, s51')
    a(f's_add_u32 s50, s50, {O_H}')
    a(f'v_mov_b32 {v(V_RD)}, {v(V_LN16)}')
    a(f'v_add_u32 {v(V_RD+1)}, 0x10000, {v(V_LN16)}')
    a(f'v_add_u32 {v(V_RD+2)}, 0x20000, {v(V_LN16)}')
    for k in range(8):
        a(f's_add_u32 s{HB+k}, s50, {(k >> 2)*114688 + (k & 3)*7168}')
    g2_out_addr(a, T2, T6)
    EO = T2
    a(f's_add_u32 s59, s57, {O_X1}')
    a('s_add_u32 s60, s59, 16384')
    a('s_waitcnt vmcnt(0)')
    stamp(a, 6)
    if STAMP:
        a('s_waitcnt lgkmcnt(0)')

    def act_ops(g):
        return [f's_add_u32 s54, s44, {4096*g}'] + \
               [f'buffer_load_dwordx4 {v(ACT+16*g+4*k,4)}, {v(V_LN16)}, {s(S_WS,4)}, s54 offen offset:{1024*k} sc1' for k in range(4)]
    actq = []
    for g in range(8):
        o = act_ops(g)
        actq.append((g, [o[0].replace('s54', 's53')], o[1].replace('s54', 's53')))
        for x in o[2:]:
            actq.append((g, [], x.replace('s54', 's53')))

    def issue_act(k):
        for _ in range(k):
            if actq:
                g, pre, op = actq.pop(0)
                emit(a, pre)
                vm.op(op, f'act{g}')
    issue_act(ACT0)
    a('s_barrier')

    def dsread(n):
        off = (n % RING)*1024
        a(f'ds_read_b128 {v(WF+4*(n % 8),4)}, {v(V_RD + (off >> 16))} offset:{off & 0xffff}')

    def act_check(g):
        assert sum(1 for o in vm.ops if o[0] == f'act{g}') == 4, g
        vm.wait(f'act{g}')
        poll_check(a, act_ops(g), [ACT + 16*g + 4*k for k in range(4)], V_CHK)

    def epilogue(blk):
        b = accb[blk]
        ops = []
        for e in range(8):
            ops.append(f'v_max_f32 {v(b+e)}, 0, {v(b+e)}')
        for e in range(8):
            ops.append(f'v_mul_f32 {v(b+e)}, {v(b+e)}, {v(b+8+e)}')
        for e in range(4):
            ops.append(f'v_cvt_pk_bf16_f32 {v(b+8+e)}, {v(b+2*e)}, {v(b+2*e+1)}')
        ops.append(f'v_bfi_b32 {v(b+8)}, 1, {s(S_LAYER)}, {v(b+8)}')
        ops.append(('vm', f'buffer_store_dwordx4 {v(b+8,4)}, {v(V_LN16)}, {s(S_WS,4)}, s{45 + (blk >> 2)} offen offset:{1024*(blk & 3)} sc1', f'h{blk}'))
        return ops

    def hslot(j):
        j %= 40
        return SETS[0] + 4*j if j < 8 else ACT + 4*(j - 8)

    def h_load(j):
        b, kk = j & 1, j >> 1
        nb, ftl = kk >> 2, kk & 3
        if nb == 4:
            a(f's_add_u32 s{HB+4*b+ftl}, s{HB+4*b+ftl}, 4096')
        vm.op(f'buffer_load_dwordx4 {v(hslot(j),4)}, {v(V_LN16)}, {s(S_WS,4)}, s{HB+4*b+ftl} offen offset:{(nb & 3)*1024} sc1', f'hg{j >> 2}')

    def h_check(g):
        assert sum(1 for o in vm.ops if o[0] == f'hg{g}') == 4, g
        vm.wait(f'hg{g}')
        rl = []
        for j in range(4*g, 4*g + 4):
            b, kk = j & 1, j >> 1
            nb, ftl = kk >> 2, kk & 3
            rl.append(f's_add_u32 s55, s50, {b*114688 + ftl*7168 + nb*1024}')
            rl.append(f'buffer_load_dwordx4 {v(hslot(j),4)}, {v(V_LN16)}, {s(S_WS,4)}, s55 offen sc1')
        poll_check(a, rl, [hslot(j) for j in range(4*g, 4*g + 4)], V_CHK)

    wdn = [wd_first]

    def wd_pair():
        j = wdn[0]
        lab = label('l0')
        a(f's_cmp_eq_u32 {s(S_LAYER)}, 0')
        a(f's_cbranch_scc0 {lab}')
        if j % 4 == 0:
            a(f's_add_u32 s56, {s(S_WDB)}, {j*1024}')
        for k in range(2):
            vm.op(f'buffer_load_dwordx4 {ar(4*(j+k),4)}, {v(V_LN16)}, {s(S_WS,4)}, s56 offen offset:{((j+k) & 3)*1024}', 'wd', True)
        a(f'{lab}:')
        wdn[0] += 2

    def pend_op(o):
        if isinstance(o, tuple):
            vm.op(o[1], o[2])
        else:
            a(o)

    N = 224
    for n in range(D):
        dsread(n)
    act_check(0)
    stamp(a, 7)
    if STAMP:
        a('s_waitcnt lgkmcnt(0)')
    gstamp(a, 'g1 start')
    started = set()
    pend = []
    dmaq = []
    hn = 0
    checked = 0
    NA = 32*PA
    last_of = {}
    for n in range(N):
        last_of[frag_info(n)[0]] = n
    cool = 0
    for n in range(N):
        blk, ks = frag_info(n)
        if n < NA and n % (4*PA) == 2*PA and checked + 1 < 8:
            checked += 1
            act_check(checked)
        if n in (40 + D, 80 + D):
            a('s_barrier')
            dmaq += dma_groups(RING + (n - D - 40), 40)
        if n in (48, NA, 128, 160, 192):
            gstamp(a, f'n={n}')
        if n + D == RING:
            vm.wait('dma')
            a('s_barrier')
        if n + D < N:
            dsread(n + D)
        a(f's_waitcnt lgkmcnt({min(D, N - 1 - n)})')
        mfma32(a, accb[blk], v(WF + 4*(n % 8), 4), v(ACT + 4*ks, 4), None if blk not in started else accb[blk])
        started.add(blk)
        for _ in range(3):
            if pend:
                pend_op(pend.pop(0))
        for bb, ln in last_of.items():
            if n == max(ln, NA - 1) + 3 and bb < 6:
                pend += epilogue(bb)
        cool -= 1
        if cool <= 0:
            cool = 2
            if actq:
                issue_act(1)
            elif dmaq:
                g = dmaq.pop(0)
                emit(a, g[:-1])
                vm.op(g[-1], 'dma')
            elif (n >= 192 - 18 and hn < 8) or (blk == 6 and hn - 8 < ks - 1):
                h_load(hn)
                hn += 1
            elif wdn[0] < 56:
                wd_pair()
                cool = 4
            else:
                cool = 0
        if n == N - 6:
            h_check(0)
    assert wdn[0] >= 56 and not dmaq and not pend, (wdn, len(dmaq), len(pend))
    stamp(a, 8)
    gstamp(a, 'g1 end')
    vm.wait('wd')
    XR = SETS[2]
    LWS = [SETS[2] + 12 + g for g in range(4)]
    LR = T3
    order = [(kk, t) for kk in range(24) for t in (2, 3, 0, 1)] + [(kk, t) for t in range(4) for kk in range(24, 28)]
    hchecked = 0
    for m, (kk, t) in enumerate(order):
        b, a_ = t >> 1, t & 1
        if m in (0, 32, 72):
            gstamp(a, f'm={m}')
        if m == 3:
            pend += epilogue(6)
        if m == 24:
            a('s_barrier')
            for rd in range(2):
                vm.op(f'buffer_load_dwordx4 {v(XR+4*rd,4)}, {v(EO)}, {s(S_WS,4)}, s{59+rd} offen sc1', 'xr')
            sd = L()
            LW = LWS[0]
            sd(f'v_bfe_u32 {v(LW)}, v0, 3, 3')
            sd(f'v_and_b32 {v(LR)}, 7, v0')
            sd(f'v_lshlrev_b32 {v(LR)}, 1, {v(LR)}')
            sd(f'v_xor_b32 {v(LR)}, {v(LR)}, {v(LW)}')
            sd(f'v_lshlrev_b32 {v(LR)}, 4, {v(LR)}')
            sd(f'v_lshl_add_u32 {v(LR)}, {v(LW)}, 8, {v(LR)}')
            sd(f'v_lshl_add_u32 {v(LR)}, {v(V_W)}, 12, {v(LR)}')
            sd(f'v_xor_b32 {v(LR+1)}, 16, {v(LR)}')
            sd(f'v_bfe_u32 {v(LW)}, v0, 5, 1')
            sd(f'v_and_b32 {v(LR+2)}, 7, v0')
            sd(f'v_xor_b32 {v(LW)}, {v(LW)}, {v(LR+2)}')
            sd(f'v_lshlrev_b32 {v(LW)}, 4, {v(LW)}')
            sd(f'v_and_b32 {v(LR+2)}, 31, v0')
            sd(f'v_lshl_add_u32 {v(LW)}, {v(LR+2)}, 8, {v(LW)}')
            sd(f'v_lshl_add_u32 {v(LW)}, {v(V_W)}, 14, {v(LW)}')
            for g in range(1, 4):
                sd(f'v_xor_b32 {v(LWS[g])}, {32*g}, {v(LW)}')
            pend += sd
        mfma32(a, G2T[t], ar(8*kk + 4*a_, 4), v(hslot(2*kk + b), 4), None if kk == 0 else G2T[t])
        for _ in range(3):
            if pend:
                pend_op(pend.pop(0))
        if m % 2 == 1 and hn < 56 and (hn < 40 or (hn - 40)//2 < m//4 - 0) and (hn < 48 or m >= HL6):
            h_load(hn)
            hn += 1
        if m % 8 == 3 and hchecked < 13 and m < 96:
            hchecked += 1
            h_check(hchecked)
        if m == 93:
            hchecked += 1
            h_check(hchecked)
        if m == 88:
            vm.wait('xr')
            X = SETS[0]
            for k in range(8):
                pend.append(f'v_lshlrev_b32 {v(X+2*k)}, 16, {v(XR+k)}')
                pend.append(f'v_and_b32 {v(X+2*k+1)}, 0xffff0000, {v(XR+k)}')
        if m >= 102 and (m - 102) % 4 in (0, 1):
            tw = (m - 102) // 4
            for g in (0, 1) if (m - 102) % 4 == 0 else (2, 3):
                a(f'ds_write_b128 {v(LWS[g])}, {v(G2T[tw]+4*g,4)} offset:{8192*(tw >> 1) + 128*(tw & 1)}')
    assert hn == 56 and hchecked == 13 and not pend, (hn, hchecked, len(pend))
    stamp(a, 9)
    gstamp(a, 'g2 end')
    for g in range(4):
        a(f'ds_write_b128 {v(LWS[g])}, {v(G2T[3]+4*g,4)} offset:{8192 + 128}')
    a('s_waitcnt lgkmcnt(0)')
    a('s_barrier')
    S = ACT
    for rd in range(2):
        for w in range(4):
            for z in range(2):
                a(f'ds_read_b128 {v(S+32*rd+8*w+4*z,4)}, {v(LR+z)} offset:{16384*w + 2048*rd}')
    for rd in range(2):
        for w in range(4):
            a(f's_waitcnt lgkmcnt({14 - 8*rd - 2*w})')
            for k in range(4):
                a(f'v_pk_add_f32 {v(X+8*rd+2*k,2)}, {v(X+8*rd+2*k,2)}, {v(S+32*rd+8*w+2*k,2)}')
        for k in range(4):
            cvtpk(a, WF + 4*rd + k, (X + 8*rd + 2*k, 0), (X + 8*rd + 2*k + 1, 0))
        a(f'buffer_store_dwordx4 {v(WF+4*rd,4)}, {v(EO)}, {s(S_DST,4)}, s{57+rd} offen sc1')
    stamp(a, 10)


def k2(a):
    stamp(a, 0)
    a(f's_load_dwordx2 s[6:7], s[0:1], {KA_WS}')
    a(f's_load_dwordx2 s[4:5], s[0:1], {KA_X}')
    common_setup(a)
    emit(a, p2_addr())
    a(f's_and_b32 {s(S_WG)}, {s(S_RHO)}, 15')
    a(f's_mul_i32 {s(S_WG)}, {s(S_WG)}, 229376')
    a(f's_add_u32 {s(S_WG)}, {s(S_WG)}, {WS_WGU}')
    a(f's_and_b32 {s(S_WDB)}, {s(S_RHO)}, 7')
    a(f's_mul_i32 {s(S_WDB)}, {s(S_WDB)}, 229376')
    a(f's_mul_i32 s28, {s(S_WAVE)}, 57344')
    a(f's_add_u32 {s(S_WDB)}, {s(S_WDB)}, s28')
    a(f's_add_u32 {s(S_WDB)}, {s(S_WDB)}, {WS_WD}')
    a(f'v_lshrrev_b32 {v(T0)}, 5, v0')
    a(f'v_lshlrev_b32 {v(T0)}, 18, {v(T0)}')
    a(f'v_lshl_add_u32 {v(T0)}, {v(V_I)}, 4, {v(T0)}')
    a(f'v_and_b32 {v(T1)}, 1, {v(V_Q)}')
    a(f'v_lshl_add_u32 {v(T0)}, {v(T1)}, 3, {v(T0)}')
    a(f's_lshl_b32 s28, {s(S_S2)}, 10')
    a(f's_lshl_b32 s29, {s(S_RHO)}, 4')
    a(f's_add_u32 s29, s29, {WS_WP}')
    a('s_add_u32 s33, s29, 4096')
    a('s_waitcnt lgkmcnt(0)')
    srd(a, S_WS, 6, 0, WS_TOTAL)
    emit(a, p2_loads())
    for z in range(2):
        a(f'buffer_load_dwordx4 {ar(A_WP+4*z,4)}, {v(P2R.GA)}, {s(S_WS,4)}, s{29 + 4*z} offen')
    srd(a, S_X, 4, 0, SZ_2M)
    srd(a, S_DST, 6, WS_X2, SZ_2M)
    for nt in range(4):
        a(f'buffer_load_dwordx2 {ar(A_XR+2*nt,2)}, {v(T0)}, {s(S_X,4)}, s28 offen offset:{256*nt}')
    c2 = p2_consts()
    side = dma_groups(0, W0A)
    emit(a, merge(c2, side))
    a(f's_waitcnt vmcnt({len(side)})')
    a(f's_branch L_p2_data')

    a('L_layer:')
    emit(a, p2_addr())
    c2 = p2_consts()
    cut = len(c2) * CUT2 // 100
    emit(a, c2[:cut])
    emit(a, p2_loads())
    side = dma_groups(40, 40)
    emit(a, merge(c2[cut:], side))
    a(f's_waitcnt vmcnt({len(side)})')
    a('L_p2_data:')
    stamp(a, 1)
    poll_check(a, p2_loads(), [P2R.LD, P2R.LD + 4], T0)
    stamp(a, 2)
    p2_body(a)
    stamp(a, 3)
    emit(a, p3_addr())
    c3 = p3_consts()
    cut = len(c3) * CUT3 // 100
    emit(a, c3[:cut])
    emit(a, p3_loads())
    dg = dma_groups(W0A, RING - W0A)
    side = [l0_only(sum(dg[k:k+4], [])) for k in range(0, len(dg), 4)]
    side += [l0_only(wd_group(j)) for j in range(0, WD_P3, 4)]
    emit(a, merge(c3[cut:], side))
    wait2(a, len(dg) + WD_P3, 0)
    poll_check(a, p3_loads(), [P3R.LD, P3R.LD + 4], T0)
    stamp(a, 4)
    p3_body(a)
    stamp(a, 5)
    ffn(a, WD_P3)
    a(f's_cmp_eq_u32 {s(S_LAYER)}, 1')
    a('s_cbranch_scc1 L_finish')
    R = P1R
    a(f's_load_dwordx2 s[4:5], s[0:1], {KA_OUT}')
    c1 = p1_consts(LDS_A, LDS_B)
    cut = len(c1) * CUT1 // 100
    emit(a, c1[:cut])
    a(f's_lshl_b32 s30, {s(S_S2)}, 10')
    a(f's_add_u32 s30, s30, {WS_X2}')
    ld = [f'buffer_load_dwordx4 {v(R.LD+4*k,4)}, {v(V_ROWO)}, {s(S_WS,4)}, s30 offen offset:{512*k} sc1' for k in range(2)]
    emit(a, ld)
    a('s_barrier')
    side = dma_groups(0, 40)
    emit(a, merge(c1[cut:], side))
    a(f's_mov_b32 {s(S_LAYER)}, 1')
    a(f's_lshl_b32 s31, {s(S_RHO)}, 13')
    a(f's_lshl_b32 s32, {s(S_WAVE)}, 11')
    a('s_add_u32 s31, s31, s32')
    a(f's_waitcnt vmcnt({len(side)}) lgkmcnt(0)')
    srd(a, S_DST, 4, 0, SZ_2M)
    poll_check(a, ld, [R.LD, R.LD + 4], T0, sentinel=True)
    stamp(a, 11)
    p1_body(a, 31, 'sc1', True)
    stamp(a, 12)
    if STAMP:
        a('s_mov_b32 s98, 1')
        dump_stamps(a, 98)
    a('s_branch L_layer')
    a('L_finish:')
    if STAMP:
        a('s_waitcnt vmcnt(0)')
        stamp(a, 11)
        a('s_mov_b32 s98, 2')
        dump_stamps(a, 98)
    a('s_endpgm')


def k1_p1(a):
    R = P1R
    stamp(a, 0)
    a(f's_load_dwordx2 s[6:7], s[0:1], {KA_WS}')
    a(f's_load_dwordx2 s[4:5], s[0:1], {KA_X}')
    common_setup(a)
    a(f's_lshl_b32 s30, {s(S_S2)}, 10')
    a('s_waitcnt lgkmcnt(0)')
    srd(a, S_X, 4, 0, SZ_2M)
    for k in range(2):
        a(f'buffer_load_dwordx4 {v(R.LD+4*k,4)}, {v(V_ROWO)}, {s(S_X,4)}, s30 offen offset:{512*k}')
    srd(a, S_WS, 6, 0, WS_TOTAL)
    emit(a, p1_consts(0, 8192))
    a(f's_lshl_b32 s31, {s(S_RHO)}, 13')
    a(f's_lshl_b32 s32, {s(S_WAVE)}, 11')
    a('s_add_u32 s31, s31, s32')
    stamp(a, 1)
    a('s_waitcnt vmcnt(0)')
    stamp(a, 2)
    p1_body(a, 31, K1F, False)
    stamp(a, 3)
    if STAMP:
        a('s_waitcnt vmcnt(0)')
        stamp(a, 4)
        a('s_mov_b32 s98, 0')
        dump_stamps(a, 98)
    a('s_endpgm')


def k1_prep(a):
    COL, CONJ, DO = 1, 4, 5
    P0, P1_ = 2, 3
    LN16, RA = 6, 7
    AD, RE, IM = 8, 16, 24
    WA = 32
    FR = 40
    stamp(a, 0)
    a('s_sub_u32 s40, s2, 256')
    a(f's_load_dwordx4 s[8:11], s[0:1], {KA_WR}')
    a(f's_load_dwordx2 s[6:7], s[0:1], {KA_WS}')
    a(f's_load_dwordx4 s[44:47], s[0:1], {KA_WG}')
    a(f's_load_dwordx2 s[48:49], s[0:1], {KA_WD}')
    a(f'v_and_b32 {v(P0)}, 63, v0')
    a(f'v_lshrrev_b32 {v(P1_)}, 6, v0')
    a(f'v_lshlrev_b32 {v(LN16)}, 4, {v(P0)}')
    a(f'v_readfirstlane_b32 s41, {v(P1_)}')
    a('s_and_b32 s42, s40, 7')
    a('s_lshl_b32 s42, s42, 5')
    a('s_lshr_b32 s43, s40, 3')
    a('s_add_u32 s42, s42, s43')
    lwd, lclr, ljoin = label('wd'), label('clr'), label('join')
    a('s_cmp_eq_u32 s41, 3')
    a(f's_cbranch_scc1 {lclr}')
    a('s_cmp_eq_u32 s41, 2')
    a(f's_cbranch_scc1 {lwd}')
    for k in range(7):
        a(f'v_add_u32 {v(RE)}, {64*k}, {v(P0)}')
        a(f'v_mul_u32_u24 {v(RE+1)}, 4682, {v(RE)}')
        a(f'v_lshrrev_b32 {v(RE+1)}, 16, {v(RE+1)}')
        a(f'v_mul_u32_u24 {v(WA+k)}, {3584 - 224}, {v(RE+1)}')
        a(f'v_lshl_add_u32 {v(WA+k)}, {v(RE)}, 4, {v(WA+k)}')
    a('s_lshr_b32 s50, s42, 4')
    a('s_and_b32 s51, s42, 15')
    a(f's_mul_i32 s52, s50, {32*3584}')
    a('s_mul_i32 s53, s51, 224')
    a('s_add_u32 s52, s52, s53')
    a('s_mul_i32 s54, s41, 7168')
    a('s_waitcnt lgkmcnt(0)')
    a('s_cmp_eq_u32 s41, 1')
    a('s_cselect_b32 s32, s46, s44')
    a('s_cselect_b32 s33, s47, s45')
    a(f's_mov_b32 s34, {512*3584}')
    a('s_mov_b32 s35, 0x20000')
    for k in range(7):
        a(f's_add_u32 m0, s54, {1024*k}')
        a(f'buffer_load_dwordx4 {v(WA+k)}, s[32:35], s52 offen lds')
    a(f'v_bfe_u32 {v(RE)}, v0, 4, 1')
    a(f'v_mul_u32_u24 {v(RA)}, 7168, {v(RE)}')
    a(f'v_bfe_u32 {v(RE)}, v0, 5, 2')
    a(f'v_lshlrev_b32 {v(RE)}, 3, {v(RE)}')
    a(f'v_bfe_u32 {v(RE+1)}, v0, 2, 2')
    a(f'v_add_u32 {v(RE)}, {v(RE)}, {v(RE+1)}')
    a(f'v_mul_u32_u24 {v(RE)}, 224, {v(RE)}')
    a(f'v_add_u32 {v(RA)}, {v(RA)}, {v(RE)}')
    a(f'v_and_b32 {v(RE)}, 1, v0')
    a(f'v_lshl_add_u32 {v(RA)}, {v(RE)}, 4, {v(RA)}')
    a(f'v_bfe_u32 {v(RE)}, v0, 1, 1')
    a(f'v_lshl_add_u32 {v(RA)}, {v(RE)}, 3, {v(RA)}')
    a('s_lshl_b32 s50, s50, 1')
    a('s_add_u32 s50, s50, s41')
    a('s_mul_i32 s53, s51, 229376')
    a(f's_add_u32 s53, s53, {WS_WGU}')
    a(f's_mul_i32 s63, s50, {PA*1024}')
    a('s_lshl_b32 s62, s50, 10')
    for blk in range(7):
        if blk < PA:
            a(f's_add_u32 s{54+blk}, s63, {1024*blk}')
        else:
            a(f's_add_u32 s{54+blk}, s62, {32768*blk}')
        a(f's_add_u32 s{54+blk}, s{54+blk}, s53')
    a(f's_branch {ljoin}')
    a(f'{lwd}:')
    a(f'v_bfe_u32 {v(RE)}, v0, 5, 1')
    a(f'v_lshlrev_b32 {v(WA)}, 10, {v(RE)}')
    a(f'v_and_b32 {v(RE)}, 31, v0')
    a(f'v_lshl_add_u32 {v(WA)}, {v(RE)}, 4, {v(WA)}')
    a('s_lshr_b32 s50, s42, 1')
    a('s_and_b32 s51, s42, 1')
    a('s_lshl_b32 s52, s50, 14')
    a('s_lshl_b32 s53, s51, 9')
    a('s_add_u32 s52, s52, s53')
    a('s_waitcnt lgkmcnt(0)')
    srd(a, 32, 48, 0, 1792*1024)
    for k in range(8):
        a(f's_add_u32 s53, s52, {2048*k}')
        a(f's_mov_b32 m0, {16384 + 1024*k}')
        a(f'buffer_load_dwordx4 {v(WA)}, s[32:35], s53 offen lds')
    a(f'v_bfe_u32 {v(RE)}, v0, 5, 1')
    a(f'v_lshlrev_b32 {v(RE)}, 3, {v(RE)}')
    a(f'v_bfe_u32 {v(RE+1)}, v0, 2, 2')
    a(f'v_add_u32 {v(RE)}, {v(RE)}, {v(RE+1)}')
    a(f'v_lshlrev_b32 {v(RA)}, 9, {v(RE)}')
    a(f'v_bfe_u32 {v(RE)}, v0, 4, 1')
    a(f'v_lshl_add_u32 {v(RA)}, {v(RE)}, 5, {v(RA)}')
    a(f'v_and_b32 {v(RE)}, 3, v0')
    a(f'v_lshl_add_u32 {v(RA)}, {v(RE)}, 3, {v(RA)}')
    a(f'v_add_u32 {v(RA)}, 16384, {v(RA)}')
    a('s_mul_i32 s52, s50, 9363')
    a('s_lshr_b32 s52, s52, 16')
    a('s_mul_i32 s53, s52, 7')
    a('s_sub_u32 s53, s50, s53')
    a('s_lshr_b32 s62, s52, 2')
    a('s_mul_i32 s62, s62, 57344')
    a('s_and_b32 s52, s52, 3')
    a('s_lshl_b32 s53, s53, 2')
    a('s_add_u32 s52, s52, s53')
    a('s_lshl_b32 s52, s52, 11')
    a('s_add_u32 s62, s62, s52')
    a(f's_mul_i32 s51, s51, {4*229376}')
    a('s_add_u32 s62, s62, s51')
    for ct in range(8):
        a(f's_add_u32 s{54+ct}, s62, {WS_WD + (ct >> 1)*229376 + (ct & 1)*1024}')
    a(f's_branch {ljoin}')
    a(f'{lclr}:')
    a('s_waitcnt lgkmcnt(0)')
    a(f'{ljoin}:')
    a(f'v_cmp_eq_u32 vcc, 0, {v(P0)}')
    a(f'v_lshlrev_b32 {v(COL)}, 6, {v(P1_)}')
    a(f'v_sub_u32 {v(CONJ)}, 256, {v(COL)}')
    a(f'v_cndmask_b32 {v(COL)}, v0, {v(CONJ)}, vcc')
    a(f'v_lshlrev_b32 {v(COL)}, 1, {v(COL)}')
    a(f'v_cmp_ne_u32 s[12:13], 0, {v(P1_)}')
    a('s_and_b64 vcc, vcc, s[12:13]')
    a(f'v_mov_b32 {v(CONJ)}, 0x80000000')
    a(f'v_cndmask_b32 {v(CONJ)}, 0, {v(CONJ)}, vcc')
    a('s_lshr_b32 s14, s42, 6')
    a('s_lshl_b32 s14, s14, 1')
    a('s_and_b32 s15, s42, 15')
    a('s_lshl_b32 s15, s15, 3')
    a('s_add_u32 s14, s14, s15')
    a('s_bfe_u32 s15, s42, 0x20004')
    a('s_lshl_b32 s15, s15, 9')
    a('s_add_u32 s14, s14, s15')
    srd(a, 20, 8, 0, 2048*514)
    srd(a, 24, 10, 0, 2048*514)
    srd(a, 28, 6, 0, WS_TOTAL)
    for z in range(2):
        for r in range(4):
            k = 4*z + r
            a(f's_add_u32 s15, s14, {z + 128*r}')
            a('s_sub_u32 s16, 2048, s15')
            a('s_and_b32 s16, s16, 2047')
            a('s_mul_i32 s15, s15, 514')
            a('s_mul_i32 s16, s16, 514')
            a(f'v_mov_b32 {v(AD+k)}, s15')
            a(f'v_mov_b32 {v(DO)}, s16')
            a(f'v_cndmask_b32 {v(AD+k)}, {v(AD+k)}, {v(DO)}, vcc')
            a(f'v_add_u32 {v(AD+k)}, {v(AD+k)}, {v(COL)}')
            a(f'buffer_load_ushort {v(RE+k)}, {v(AD+k)}, s[20:23], 0 offen')
            a(f'buffer_load_ushort {v(IM+k)}, {v(AD+k)}, s[24:27], 0 offen')
    stamp(a, 1)
    CL = 72
    for k in range(4):
        a(f'v_mov_b32 {v(CL+k)}, -1')
    per = CLR_SIZE // 256 // 4096
    a(f'v_lshlrev_b32 {v(DO)}, 4, v0')
    a(f's_mul_i32 s50, s42, {per*4096}')
    for k in range(per):
        a(f's_add_u32 s51, s50, {CLR_BASE + 4096*k}')
        a(f'buffer_store_dwordx4 {v(CL,4)}, {v(DO)}, s[28:31], s51 offen {CLRF}')
    stamp(a, 2)
    a(f'v_lshrrev_b32 {v(DO)}, 4, {v(P0)}')
    a(f'v_lshlrev_b32 {v(DO)}, 6, {v(DO)}')
    a(f'v_lshl_add_u32 {v(DO)}, {v(P1_)}, 4, {v(DO)}')
    a(f'v_and_b32 {v(P0)}, 15, {v(P0)}')
    a(f'v_add_u32 {v(DO)}, {v(DO)}, {v(P0)}')
    a(f'v_lshlrev_b32 {v(DO)}, 4, {v(DO)}')
    a('s_lshl_b32 s17, s42, 13')
    a(f's_add_u32 s17, s17, {WS_WP}')
    a('s_add_u32 s18, s17, 4096')
    l2, lf = label('c2'), label('fin')
    a(f's_waitcnt vmcnt({per})')
    stamp(a, 3)
    a('s_barrier')
    for k in range(8):
        a(f'v_lshl_or_b32 {v(RE+k)}, {v(IM+k)}, 16, {v(RE+k)}')
        a(f'v_xor_b32 {v(RE+k)}, {v(RE+k)}, {v(CONJ)}')
    a(f'buffer_store_dwordx4 {v(RE,4)}, {v(DO)}, s[28:31], s17 offen {K1F}')
    a(f'buffer_store_dwordx4 {v(RE+4,4)}, {v(DO)}, s[28:31], s18 offen {K1F}')
    if STAMP:
        a('s_waitcnt lgkmcnt(0)')
    a('s_cmp_eq_u32 s41, 3')
    a(f's_cbranch_scc1 {lf}')
    a('s_cmp_eq_u32 s41, 2')
    a(f's_cbranch_scc1 {l2}')
    for blk in range(7):
        for h in range(2):
            a(f'ds_read_b64_tr_b16 {v(FR+4*blk+2*h,2)}, {v(RA)} offset:{32*blk + 4*224*h}')
    for blk in range(7):
        a(f's_waitcnt lgkmcnt({12 - 2*blk})')
        a(f'buffer_store_dwordx4 {v(FR+4*blk,4)}, {v(LN16)}, s[28:31], s{54+blk} offen {K1F}')
    a(f's_branch {lf}')
    a(f'{l2}:')
    a('s_cmp_ge_u32 s42, 224')
    a(f's_cbranch_scc1 {lf}')
    for ct in range(8):
        for h in range(2):
            a(f'ds_read_b64_tr_b16 {v(FR+4*ct+2*h,2)}, {v(RA)} offset:{64*ct + 2048*h}')
    for ct in range(8):
        a(f's_waitcnt lgkmcnt({14 - 2*ct})')
        a(f'buffer_store_dwordx4 {v(FR+4*ct,4)}, {v(LN16)}, s[28:31], s{54+ct} offen {K1F}')
    a(f'{lf}:')
    if STAMP:
        stamp(a, 4)
        a('s_waitcnt vmcnt(0)')
        stamp(a, 5)
        a(f's_mov_b32 {s(S_SPIN)}, 0')
        a('s_mov_b32 s98, 0')
        dump_stamps(a, 98)
    a('s_endpgm')


def kernel_head(a, name):
    a.raw(f'.globl {name}\n.p2align 8\n.type {name},@function')
    a(f'{name}:')


def descriptor(name, vg, ag=0, sg=100):
    acc = (vg + 3) // 4 * 4
    return f""".amdhsa_kernel {name}
  .amdhsa_next_free_vgpr {acc + ag if ag else vg}
  .amdhsa_next_free_sgpr {sg}
  .amdhsa_accum_offset {acc}
  .amdhsa_group_segment_fixed_size 0
  .amdhsa_kernarg_size 80
  .amdhsa_user_sgpr_count 2
  .amdhsa_user_sgpr_kernarg_segment_ptr 1
  .amdhsa_system_sgpr_workgroup_id_x 1
.end_amdhsa_kernel
"""


def build():
    a = Asm()
    kernel_head(a, 'k1_kernel')
    a('s_cmp_ge_u32 s2, 256')
    a('s_cbranch_scc1 L_k1_prep')
    k1_p1(a)
    a('L_k1_prep:')
    a('s_cmp_ge_u32 s2, 512')
    a('s_cbranch_scc1 L_k1_exit')
    k1_prep(a)
    a('L_k1_exit:')
    a('s_endpgm')
    kernel_head(a, 'k2_kernel')
    a('s_cmp_ge_u32 s2, 256')
    a('s_cbranch_scc1 L_k2_exit')
    k2(a)
    a('L_k2_exit:')
    a('s_endpgm')
    descs = [descriptor('k1_kernel', P1R.NV), descriptor('k2_kernel', 256, 256)]
    launches = [('k1_kernel', 512, 24576), ('k2_kernel', 256, LDS_TOTAL)]
    head = ''.join(f'; @launch kernel={k} grid=({g},1,1) block=(256,1,1) lds={l}\n' for k, g, l in launches)
    txt = head + '.amdgcn_target "amdgcn-amd-amdhsa--gfx950"\n.text\n' + a.finalize()
    txt += '.section .rodata,"a"\n' + ''.join('.p2align 6\n' + d for d in descs)
    return txt


if __name__ == '__main__':
    out = sys.argv[1]
    STAMP = 'stamp' in sys.argv[2:]
    EXP = set(sys.argv[2:])
    for x in sys.argv[2:]:
        if '=' in x:
            k_, v_ = x.split('=')
            globals()[k_] = int(v_) if v_.lstrip('-').isdigit() else v_.replace('+', ' ')
    open(out, 'w').write(build())
    print('wrote', out)
```
